```python
import torch

def _softmax(x, axis=-1):
    return torch.softmax(x, dim=axis)

def _gelu(x):
    return torch.nn.functional.gelu(x, approximate='tanh')

def _silu(x):
    return torch.nn.functional.silu(x)

def _sigmoid(x):
    return torch.sigmoid(x)

def _layernorm(x, axis=-1, eps=1e-05):
    m = x.mean(dim=axis, keepdim=True)
    v = x.var(dim=axis, keepdim=True, unbiased=False)
    return (x - m) / torch.sqrt(v + eps)

def _scatter_add(tgt, idx, src, axis=0):
    return tgt.clone().index_add_(axis, idx, src)

def _segment_sum(src, seg, n):
    out = torch.zeros((n,) + src.shape[1:], dtype=src.dtype)
    return out.index_add_(0, seg, src)

def _pad(x, pw):
    flat = tuple((v for pair in reversed(pw) for v in pair))
    return torch.nn.functional.pad(x, flat)
kernel_name = 'standalone__conformer_family_branchformer__speech'

def setup_inputs():

    _w = lambda a: (lambda t: t.to(torch.bfloat16) if t.is_floating_point() else t)(torch.as_tensor(a))
    B, T, D, K = (2, 4000, 144, 3)
    s = float(D) ** (-0.5)
    return {'x': _w((lambda *s: torch.randn(*s, dtype=torch.bfloat16) * 0.05)(B, T, D)), 'w_q': _w((lambda *s: torch.randn(*s, dtype=torch.bfloat16) * 1.6)(D, D) * s), 'w_k': _w((lambda *s: torch.randn(*s, dtype=torch.bfloat16) * 1.6)(D, D) * s), 'w_v': _w((lambda *s: torch.randn(*s, dtype=torch.bfloat16) * 0.4)(D, D) * s), 'w_ao': _w((lambda *s: torch.randn(*s, dtype=torch.bfloat16) * 0.4)(D, D) * s), 'w_up': _w((lambda *s: torch.randn(*s, dtype=torch.bfloat16) * 0.8)(D, 2 * D) * s), 'dw': _w((lambda *s: torch.randn(*s, dtype=torch.bfloat16) * 0.8)(K, D) * (1.0 / K)), 'w_dn': _w((lambda *s: torch.randn(*s, dtype=torch.bfloat16) * 0.4)(D, D) * s), 'w_merge': _w((lambda *s: torch.randn(*s, dtype=torch.bfloat16) * 0.4)(2 * D, D) * s)}

def reference(x, w_q, w_k, w_v, w_ao, w_up, dw, w_dn, w_merge):
    B, T, D = x.shape
    K = dw.shape[0]
    xa = _layernorm(x, axis=-1)
    q = torch.einsum('btd,de->bte', xa, w_q)
    k = torch.einsum('btd,de->bte', xa, w_k)
    v = torch.einsum('btd,de->bte', xa, w_v)
    logits = torch.einsum('btd,bsd->bts', q, k) * float(D) ** (-0.5)
    attn = _softmax(logits, axis=-1)
    ya = torch.einsum('bts,bsd->btd', attn, v)
    ya = torch.einsum('btd,de->bte', ya, w_ao)
    xc = _layernorm(x, axis=-1)
    h = _gelu(torch.einsum('btd,de->bte', xc, w_up))
    u = h[..., :D].clone()
    g = _layernorm(h[..., D:], axis=-1)
    pad = K // 2
    gp = _pad(g, ((0, 0), (pad, pad), (0, 0)))
    conv = torch.zeros_like(g)
    for i in range(K):
        conv = conv + gp[:, i:i + T, :] * dw[i][None, None, :]
    yc = torch.einsum('btd,de->bte', u * conv, w_dn)
    merged = torch.concatenate([ya, yc], axis=-1)
    out = torch.einsum('btf,fd->btd', merged, w_merge)
    return x + out
```

```python
class Asm:
    def __init__(self):
        self.lines = []
    def __call__(self, s):
        for l in s.split("\n"):
            l = l.strip()
            if l:
                self.lines.append(("" if l.endswith(":") else "    ") + l)
    def raw(self, s):
        self.lines.append(s)
    def text(self):
        return "\n".join(self.lines) + "\n"

def v(a, n=1):
    return f"v{a}" if n == 1 else f"v[{a}:{a+n-1}]"
def a(x, n=1):
    return f"a{x}" if n == 1 else f"a[{x}:{x+n-1}]"
def s(x, n=1):
    return f"s{x}" if n == 1 else f"s[{x}:{x+n-1}]"

HEADER = """.amdgcn_target "amdgcn-amd-amdhsa--gfx950"
.text
"""
def kernel_begin(name):
    return f""".globl {name}
.p2align 8
.type {name},@function
{name}:
"""
def kernel_desc(name, vgpr, sgpr, accum, extra=""):
    return f""".amdhsa_kernel {name}
  .amdhsa_next_free_vgpr {vgpr}
  .amdhsa_next_free_sgpr {sgpr}
  .amdhsa_accum_offset {accum}
  .amdhsa_group_segment_fixed_size 0
  .amdhsa_kernarg_size 96
  .amdhsa_user_sgpr_count 2
  .amdhsa_user_sgpr_kernarg_segment_ptr 1
  .amdhsa_system_sgpr_workgroup_id_x 1
{extra}.end_amdhsa_kernel
"""

class Sched:
    def __init__(self):
        self.ds_issue = []
        self.covered = 0
```

```python
import re
REG = re.compile(r"^(-)?(abs\()?([vas])(\d+)\)?$|^(-)?([vas])\[(\d+):(\d+)\]$")
def regs_of(op):
    op = op.strip()
    if op in ("vcc", "vcc_lo", "vcc_hi"): return [("s", "vcc")]
    if op in ("exec", "exec_lo", "exec_hi"): return [("s", "exec")]
    if op == "m0": return [("s", "m0")]
    m = re.match(r"^-?\|?(?:abs\()?([vas])(\d+)\)?\|?$", op)
    if m: return [(m.group(1), int(m.group(2)))]
    m = re.match(r"^-?([vas])\[(\d+):(\d+)\]$", op)
    if m: return [(m.group(1), i) for i in range(int(m.group(2)), int(m.group(3)) + 1)]
    return []

TRANS = ("v_exp_f32", "v_log_f32", "v_rcp_f32", "v_rsq_f32", "v_sqrt_f32", "v_sin_f32", "v_cos_f32")
class Ins:
    def __init__(self, text):
        self.text = text
        t = text.split(";")[0].strip()
        self.t = t
        self.label = t.endswith(":") or t.startswith(".") or t == ""
        if self.label:
            self.op = ""; self.w = []; self.r = []; self.kind = "none"; return
        parts = t.split(None, 1)
        self.op = op = parts[0]
        rest = parts[1] if len(parts) > 1 else ""
        ops = [x.strip() for x in re.split(r",(?![^\[]*\])", rest)]
        if ops:
            last = ops[-1].split()
            self.mods = " ".join(last[1:]) if last else ""
            ops[-1] = last[0] if last else ""
        else:
            self.mods = ""
        self.ops = ops
        R = [regs_of(o) for o in ops]
        w, r = [], []
        self.srcC = []; self.srcAB = []
        if op.startswith("v_mfma"):
            self.kind = "mfma"
            self.passes = 8 if "32x32" in op else 4
            w = R[0]; self.srcAB = R[1] + R[2]; self.srcC = R[3]; r = self.srcAB + self.srcC
        elif op.startswith("v_cmp"):
            self.kind = "valu"; w = R[0]; r = sum(R[1:], [])
            if op.startswith("v_cmpx"): w = w + [("s", "exec")]
        elif op.startswith("v_readfirstlane") or op.startswith("v_readlane"):
            self.kind = "valu"; w = R[0]; r = sum(R[1:], [])
        elif op.startswith("v_permlane") and "swap" in op:
            self.kind = "valu"; w = R[0] + R[1]; r = R[0] + R[1]
        elif op.startswith("v_"):
            self.kind = "valu"; w = R[0]; r = sum(R[1:], [])
            if op.startswith(("v_fmac", "v_dot2c", "v_mac")) or "_dpp" in op: r = r + R[0]
            if op.startswith(("v_add_co", "v_sub_co", "v_addc_co", "v_subb_co")):
                w = R[0] + R[1]; r = sum(R[2:], [])
            if op.startswith("v_cndmask") and len(ops) == 3: r = r + [("s", "vcc")]
        elif op.startswith("ds_read") or op.startswith("ds_bpermute") or op.startswith("ds_permute") or op.startswith("ds_swizzle"):
            self.kind = "ds"; w = R[0]; r = sum(R[1:], [])
        elif op.startswith("ds_"):
            self.kind = "ds"; r = sum(R, [])
        elif op.startswith("buffer_load") or op.startswith("global_load"):
            self.kind = "vmem"
            if "lds" in self.mods.split() or "_lds_" in op:
                r = sum(R, []) + [("s", "m0")]; self.ldsdma = True
            else:
                w = R[0]; r = sum(R[1:], [])
        elif op.startswith("buffer_store") or op.startswith("global_store") or op.startswith("buffer_atomic") or op.startswith("global_atomic"):
            self.kind = "vmem"; r = sum(R, [])
            self.store = True
            if op.startswith("buffer_store"): self.sdata = R[0]
            elif op.startswith("global_store"): self.sdata = R[1]
            else: self.sdata = []
        elif op.startswith("buffer_"):
            self.kind = "vmem"
        elif op.startswith("s_"):
            self.kind = "salu"
            if op.startswith(("s_cmp", "s_cbranch", "s_branch", "s_waitcnt", "s_barrier", "s_nop", "s_endpgm", "s_sleep", "s_setprio", "s_bitcmp")):
                r = sum(R, [])
            else:
                w = R[0] if R else []; r = sum(R[1:], [])
                if "saveexec" in op: w = w + [("s", "exec")]
        else:
            raise ValueError("unknown instr " + text)
        self.w = w; self.r = r
        self.trans = any(op.startswith(x) for x in TRANS)
        self.dpp = "_dpp" in op
        self.dot = op.startswith("v_dot")
        self.perm = op.startswith("v_permlane")
        self.lane = op.startswith(("v_readfirstlane", "v_readlane", "v_writelane"))

def need(p, c):
    n = 0
    pw = set(p.w); cr = set(c.r); cw = set(c.w)
    vw = {x for x in pw if x[0] in "va"}
    sw = {x for x in pw if x[0] == "s"}
    if p.kind == "valu":
        if c.kind == "mfma" and vw & cr: n = max(n, 2)
        if c.kind == "valu" and c.dpp and vw & cr: n = max(n, 2)
        if c.kind == "valu" and c.perm and vw & cr: n = max(n, 2)
        if c.kind == "valu" and c.lane and vw & cr: n = max(n, 1)
        if p.trans and c.kind == "valu" and not c.trans and vw & cr: n = max(n, 1)
        if p.trans and c.kind in ("ds", "vmem") and vw & cr: n = max(n, 1)
        if p.dot and c.kind != "salu" and vw & (cr | cw):
            if c.dot and c.op == p.op and not (vw & set(sum([regs_of(o) for o in c.ops[1:3]], []))): pass
            else: n = max(n, 3)
        if sw and c.kind == "valu" and sw & cr: n = max(n, 4 if c.lane else 2)
        if sw and c.kind == "vmem" and sw & cr: n = max(n, 5)
        if ("s", "exec") in sw:
            if c.kind == "mfma": n = max(n, 4)
            if c.kind == "valu" and (c.lane or c.perm): n = max(n, 4)
            if c.kind == "valu" and c.dpp: n = max(n, 5)
        if ("s", "vcc") in sw and c.op.startswith("s_cbranch_vcc"): n = max(n, 5)
        if sw and c.kind == "salu" and sw & cr: n = max(n, 1)
    if p.kind == "salu":
        if ("s", "m0") in sw and getattr(c, "ldsdma", False): n = max(n, 1)
    if p.kind == "mfma":
        big = 12 if p.passes == 8 else 8
        if c.kind == "mfma":
            if vw & set(c.srcAB): n = max(n, big)
            if vw & set(c.srcC):
                if set(c.srcC) == vw and c.op == p.op: pass
                else: n = max(n, big - 2)
            elif vw & cw and not (cw == vw and False):
                n = max(n, big)
        elif c.kind in ("valu", "ds", "vmem"):
            if vw & (cr | cw): n = max(n, big)
        if c.kind == "valu" and set(p.srcC) & cw: n = max(n, 7 if p.passes == 8 else 3)
    if p.kind == "vmem" and getattr(p, "store", False) and len(p.sdata) >= 3:
        if set(p.sdata) & cw: n = max(n, 2 if c.kind == "valu" else 1)
    return n

def fix(lines, auto=True, timed=True, name=""):
    out = []; hist = []
    t = 0; lastm = None; probs = []
    for text in lines:
        ins = Ins(text)
        if ins.label:
            out.append(text); continue
        tt = t + 1
        if timed and ins.kind == "mfma" and lastm is not None:
            tt = max(tt, lastm[1] + lastm[0].passes)
        req = tt
        for p, tp in hist[-40:]:
            n = need(p, ins)
            if n:
                margin = 0
                if tp + n + 1 > req: req = tp + n + 1
        if req > tt:
            if auto:
                k = req - (t + 1)
                while k > 0:
                    m = min(k, 16)
                    out.append(f"    s_nop {m-1}")
                    t += m; k -= m
                tt = max(t + 1, tt)
            else:
                probs.append((text, req - tt))
        out.append(text)
        if ins.op == "s_nop":
            tt = t + int(ins.ops[0]) + 1
        t = tt
        if ins.kind == "mfma": lastm = (ins, t)
        hist.append((ins, t))
    return out, probs
```

```python
from asmlib import *
import math, struct

def f2u(x):
    return struct.unpack("<I", struct.pack("<f", x))[0]

XI = 0x000000
QF = 0x240000
ZF = 0x480000
WF = 0x6C0000
XCH = 0x700000
WS_USED = XCH + 256 * 10240
STAMP = 0x8000000
NQ_WG, NC_WG = 100, 143
C0 = NQ_WG; W0 = NQ_WG + NC_WG; K1_WGS = W0 + 4
IMG2 = 41984
DWOFF = 83968
UOFF = 86016
K1_LDS = UOFF + 4 * 9216
SCL = (144 ** -0.5) * math.log2(math.e)

def reduce4(A, regs, tmp):
    for sw in ("v_permlane16_swap_b32", "v_permlane32_swap_b32"):
        for i, r in enumerate(regs): A(f"v_mov_b32 v{tmp+i}, v{r}")
        for i, r in enumerate(regs): A(f"{sw} v{tmp+i}, v{r}")
        for i, r in enumerate(regs): A(f"v_add_f32 v{r}, v{r}, v{tmp+i}")

def layernorm_x(A, X, XA, T):
    s_, q_, m_, r_ = T, T+1, T+2, T+3
    A(f"s_mov_b32 s60, 0x3f803f80")
    A(f"v_mov_b32 v{s_}, 0")
    A(f"v_mov_b32 v{q_}, 0")
    for i in range(18):
        A(f"v_dot2_f32_bf16 v{s_}, v{X+i}, s60, v{s_}")
        A(f"v_dot2_f32_bf16 v{q_}, v{X+i}, v{X+i}, v{q_}")
    reduce4(A, [s_, q_], T+4)
    stats(A, s_, q_, m_, r_)
    for i in range(18):
        a_, b_ = T+4+2*(i%2), T+5+2*(i%2)
        A(f"v_lshlrev_b32 v{a_}, 16, v{X+i}")
        A(f"v_and_b32 v{b_}, 0xffff0000, v{X+i}")
        A(f"v_fma_f32 v{a_}, v{a_}, v{r_}, v{m_}")
        A(f"v_fma_f32 v{b_}, v{b_}, v{r_}, v{m_}")
        A(f"v_cvt_pk_bf16_f32 v{XA+i}, v{a_}, v{b_}")

def stats(A, s_, q_, m_, r_):
    A(f"v_mul_f32 v{s_}, {hex(f2u(1/144))}, v{s_}")
    A(f"v_mul_f32 v{q_}, {hex(f2u(1/144))}, v{q_}")
    A(f"v_fma_f32 v{q_}, -v{s_}, v{s_}, v{q_}")
    A(f"v_max_f32 v{q_}, 0, v{q_}")
    A(f"v_add_f32 v{q_}, {hex(f2u(1e-5))}, v{q_}")
    A(f"v_rsq_f32 v{r_}, v{q_}")
    A(f"v_mul_f32 v{m_}, -v{s_}, v{r_}")

def gemm(A, read, B, ACC, FB, swap=False, between=None):
    def reads(t):
        base = FB + 18 * (t % 3)
        return [read(t, p, base + 2*p) for p in [8, 0, 1, 2, 3, 4, 5, 6, 7]]
    for x in reads(0): A(x)
    A("s_waitcnt lgkmcnt(6)")
    for x in reads(1): A(x)
    for t in range(9):
        A("s_waitcnt lgkmcnt(9)" if t < 8 else "s_waitcnt lgkmcnt(0)")
        base = FB + 18 * (t % 3)
        acc = f"v[{ACC+4*t}:{ACC+4*t+3}]"
        extra = between(t) if between else []
        k = 0
        for i, s_ in enumerate([4, 0, 1, 2, 3]):
            n = 4 if s_ < 4 else 2
            f = f"v[{base+4*s_}:{base+4*s_+n-1}]"; b = f"v[{B+4*s_}:{B+4*s_+n-1}]"
            op = "v_mfma_f32_16x16x32_bf16" if s_ < 4 else "v_mfma_f32_16x16x16_bf16"
            c = "0" if i == 0 else acc
            A(f"{op} {acc}, {b}, {f}, {c}" if swap else f"{op} {acc}, {f}, {b}, {c}")
            if i == 0 and t + 2 < 9:
                rr = reads(t+2)
                for x in rr[:6]: A(x)
                pend = rr[6:]
            elif i == 1 and t + 2 < 9:
                A("s_waitcnt lgkmcnt(12)")
                for x in pend: A(x)
            m = (len(extra) * (i + 1)) // 5
            for x in extra[k:m]: A(x)
            k = m

def srd(A, d, plo, size):
    A(f"s_mov_b32 s{d}, s{plo}")
    A(f"s_mov_b32 s{d+1}, s{plo+1}")
    A(f"s_mov_b32 s{d+2}, {size}")
    A(f"s_mov_b32 s{d+3}, 0x20000")

def srd_off(A, d, plo, soff, size):
    A(f"s_add_u32 s{d}, s{plo}, s{soff}")
    A(f"s_addc_u32 s{d+1}, s{plo+1}, 0")
    A(f"s_mov_b32 s{d+2}, {size}")
    A(f"s_mov_b32 s{d+3}, 0x20000")

def linear_dma(A, srdn, ldsbase, vL16, wv):
    A(f"s_lshl_b32 s61, s{wv}, 10")
    for k in range(5):
        A(f"s_add_u32 m0, s61, {ldsbase + k*8192}")
        A(f"s_add_u32 s62, s61, {k*8192}")
        A(f"buffer_load_dwordx4 v{vL16}, s[{srdn}:{srdn+3}], s62 offen lds")
    lab = f"L_k1_lin{srdn}_{ldsbase}_{len(A.lines)}"
    A(f"s_cmp_lg_u32 s{wv}, 7")
    A(f"s_cbranch_scc1 {lab}")
    A(f"s_mov_b32 m0, {ldsbase + 40960}")
    A(f"s_mov_b32 s62, 40960")
    A(f"buffer_load_dwordx4 v{vL16}, s[{srdn}:{srdn+3}], s62 offen lds")
    A(f"{lab}:")

def gen_k1(name, stamps=False):
    A = Asm()
    PX, PWQ, PWK, PWV, PWAO, PWUP, PDW, PWDN, PWM, POUT, PDBG, PWS = 16, 18, 20, 22, 24, 26, 28, 30, 32, 34, 36, 38
    WV = 3
    lane, vg, vtok, vL16, vtr = 1, 2, 3, 4, 5
    T = 8
    X = 20
    XA = 40
    FB = 58
    ACC = 112
    B2 = 148
    ACC2 = 168
    A(f"""
    s_cmp_ge_u32 s2, {K1_WGS}
    s_cbranch_scc1 L_k1_end
    s_load_dwordx16 s[16:31], s[0:1], 0
    s_load_dwordx8 s[32:39], s[0:1], 64
    v_lshrrev_b32 v{T}, 6, v0
    v_and_b32 v{lane}, 63, v0
    v_readfirstlane_b32 s{WV}, v{T}
    v_lshrrev_b32 v{vg}, 4, v{lane}
    v_and_b32 v{vtok}, 15, v{lane}
    v_lshlrev_b32 v{vL16}, 4, v{lane}
    v_lshrrev_b32 v{T}, 2, v{lane}
    v_mul_u32_u24 v{T}, 288, v{T}
    v_and_b32 v{T+1}, 3, v{lane}
    v_lshl_add_u32 v{vtr}, v{T+1}, 3, v{T}
    s_waitcnt lgkmcnt(0)
    """)
    if stamps:
        A("s_memrealtime s[70:71]")
    A(f"""
    s_cmp_ge_u32 s2, {W0}
    s_cbranch_scc1 L_k1_roleW
    s_cmp_ge_u32 s2, {C0}
    s_cbranch_scc1 L_k1_roleC
    """)
    def trread(vaddr, base=0):
        def rd(t, p, reg):
            return f"ds_read_b64_tr_b16 v[{reg}:{reg+1}], v{vaddr} offset:{base + p*4608 + t*32}"
        return rd
    def xloads(srdn, voff, dst=X):
        for p in range(9):
            A(f"buffer_load_dwordx2 v[{dst+2*p}:{dst+2*p+1}], v{voff}, s[{srdn}:{srdn+3}], 0 offen offset:{32*p}")

    A("L_k1_roleQ:")
    srd(A, 40, PX, 2304000); srd(A, 44, PWQ, 41472); srd(A, 48, PWK, 41472); srd(A, 52, PWS, WS_USED)
    vx, va1, va2, vk0, vk1 = 6, 7, T+8, T+9, T+10
    A(f"""
    s_mul_i32 s4, s2, 5
    s_add_u32 s4, s4, s{WV}
    s_cmp_ge_u32 s{WV}, 5
    s_cbranch_scc1 L_k1_q_nox
    s_lshl_b32 s5, s4, 4
    v_add_u32 v{vx}, s5, v{vtok}
    v_mul_u32_u24 v{vx}, 288, v{vx}
    v_lshl_add_u32 v{vx}, v{vg}, 3, v{vx}
    """)
    xloads(40, vx)
    A("L_k1_q_nox:")
    linear_dma(A, 44, 0, vL16, WV)
    A(f"""
    v_lshrrev_b32 v{T}, 2, v{lane}            ; m
    v_and_b32 v{T+1}, 3, v{lane}
    v_xor_b32 v{T+1}, v{T+1}, v{vg}           ; q4 = (L&3) ^ (m>>2)   (m>>2 == L>>4)
    v_lshlrev_b32 v{T+1}, 4, v{T+1}
    v_mad_u32_u24 v{va2}, v{T}, s63, v{T+1}   ; placeholder
    """.replace(f"v_mad_u32_u24 v{va2}, v{T}, s63, v{T+1}   ; placeholder", f"v_mul_u32_u24 v{va2}, 288, v{T}\n    v_add_u32 v{va2}, v{va2}, v{T+1}"))
    A(f"""
    v_and_b32 v{T+2}, 3, v{T}                 ; m&3
    v_lshl_add_u32 v{T+2}, v{vg}, 3, v{T+2}   ; 8*(m>>2) + (m&3)
    v_mul_u32_u24 v{va1}, 288, v{T+2}
    v_add_u32 v{va1}, v{va1}, v{T+1}
    s_lshr_b32 s5, s{WV}, 1
    s_lshl_b32 s5, s5, 5
    s_and_b32 s6, s{WV}, 1
    s_lshl_b32 s6, s6, 2
    s_add_u32 s5, s5, s6
    s_mul_i32 s5, s5, 288
    s_mul_i32 s6, s{WV}, 5120
    """)
    for s_ in range(5):
        A(f"s_add_u32 m0, s6, {IMG2 + s_*1024}")
        A(f"s_add_u32 s62, s5, {64*s_}")
        A(f"buffer_load_dwordx4 v{va1}, s[48:51], s62 offen lds")
    A(f"""
    s_cmp_ge_u32 s{WV}, 5
    s_cbranch_scc1 L_k1_q_poison
    s_lshl_b32 s6, s{WV}, 10
    s_add_u32 m0, s6, {IMG2 + 40*1024}
    s_lshl_b32 s62, s{WV}, 6
    s_add_u32 s62, s62, {128*288}
    buffer_load_dwordx4 v{va2}, s[48:51], s62 offen lds
    s_waitcnt vmcnt(11)
    """)
    layernorm_x(A, X, XA, T)
    A(f"""
    s_and_b32 s5, s4, 1
    s_lshl_b32 s6, s5, 4
    s_mul_i32 s7, s5, 12
    s_xor_b32 s6, s6, s7
    v_xor_b32 v{T}, s6, v{vtok}
    v_lshrrev_b32 v{T+1}, 1, v{vg}            ; g>>1
    v_lshlrev_b32 v{T+2}, 3, v{T+1}
    v_xor_b32 v{T}, v{T}, v{T+2}
    v_lshl_add_u32 v{T}, v{T+1}, 5, v{T}
    v_lshlrev_b32 v{T}, 4, v{T}
    v_and_b32 v{T+2}, 1, v{vg}
    v_lshl_add_u32 v{T}, v{T+2}, 3, v{T}
    s_lshr_b32 s6, s4, 1
    s_mul_i32 s6, s6, 9216
    s_add_u32 s8, s6, {XI}
    s_add_u32 s9, s6, {XI + 4096}
    s_add_u32 s10, s6, {XI + 8192}
    v_cmp_eq_u32 vcc, 3, v{vg}
    v_and_b32 v{T+3}, 0xffff, v{XA+17}
    v_or_b32 v{T+3}, 0x3f800000, v{T+3}
    v_mov_b32 v{T+4}, v{XA+16}
    v_cndmask_b32 v{T+5}, v{XA+17}, v{T+3}, vcc
    """)
    for p in range(8):
        A(f"buffer_store_dwordx2 v[{XA+2*p}:{XA+2*p+1}], v{T}, s[52:55], s{8 + p//4} offen offset:{(p%4)*1024}")
    A(f"buffer_store_dwordx2 v[{T+4}:{T+5}], v{T}, s[52:55], s10 offen")
    A(f"""
    v_lshrrev_b32 v{T+6}, 2, v{vtok}
    v_xor_b32 v{T+6}, v{T+6}, v{T+1}
    v_lshlrev_b32 v{T+6}, 4, v{T+6}
    v_lshl_add_u32 v{T+6}, v{vtok}, 6, v{T+6}
    v_lshl_add_u32 v{T+6}, v{T+2}, 3, v{T+6}
    v_add_u32 v{vk0}, {IMG2}, v{T+6}
    v_xor_b32 v{vk1}, 32, v{vk0}
    s_waitcnt vmcnt(9)
    s_barrier
    """)
    gemm(A, trread(vtr), XA, ACC, FB)
    for t in range(9):
        A(f"v_cvt_pk_bf16_f32 v{B2+2*t}, v{ACC+4*t}, v{ACC+4*t+1}")
        A(f"v_cvt_pk_bf16_f32 v{B2+2*t+1}, v{ACC+4*t+2}, v{ACC+4*t+3}")
    def wkread(t, p, reg):
        return f"ds_read_b64 v[{reg}:{reg+1}], v{vk0 if p % 2 == 0 else vk1} offset:{(t*5 + p//2)*1024}"
    gemm(A, wkread, B2, ACC2, FB)
    n_, c_ = T, T+1
    A(f"v_mul_f32 v{n_}, v{ACC2}, v{ACC2}")
    for i in range(1, 36):
        A(f"v_fmac_f32 v{n_}, v{ACC2+i}, v{ACC2+i}")
    reduce4(A, [n_], T+4)
    A(f"""
    v_mov_b32 v{c_}, v{ACC2+35}
    v_mov_b32 v{T+4}, v{ACC2+35}
    v_sqrt_f32 v{n_}, v{n_}
    v_permlane32_swap_b32 v{T+4}, v{c_}
    v_mov_b32 v{T+4}, v{c_}
    v_mov_b32 v{T+5}, {hex(f2u(60.0))}
    s_mov_b32 s60, {hex(f2u(-13.0 * SCL))}
    v_permlane16_swap_b32 v{T+4}, v{c_}
    v_fma_f32 v{n_}, v{n_}, s60, v{T+5}          ; -m = 60 - 13*|q'|*scl
    s_mov_b32 s60, {hex(f2u(SCL))}
    v_mul_f32 v{c_}, {hex(f2u(-SCL))}, v{c_}
    """)
    for i in range(36):
        A(f"v_fma_f32 v{ACC2+i}, v{ACC2+i}, s60, v{c_}")
    A(f"v_cmp_eq_u32 vcc, 3, v{vg}")
    A(f"v_cndmask_b32 v{ACC2+35}, v{ACC2+35}, v{n_}, vcc")
    for i in range(18):
        A(f"v_cvt_pk_bf16_f32 v{B2+i}, v{ACC2+2*i}, v{ACC2+2*i+1}")
    A(f"""
    s_and_b32 s5, s4, 1
    s_lshl_b32 s5, s5, 4
    v_add_u32 v{T+2}, s5, v{vtok}
    v_and_b32 v{T+3}, 1, v{vg}
    v_lshrrev_b32 v{T+4}, 1, v{vg}
    v_lshl_add_u32 v{T+5}, v{T+3}, 5, v{T+2}
    v_lshlrev_b32 v{T+5}, 4, v{T+5}
    v_lshl_add_u32 v{T+5}, v{T+4}, 10, v{T+5}
    v_lshl_add_u32 v{T+6}, v{T+4}, 5, v{T+2}
    v_lshlrev_b32 v{T+6}, 4, v{T+6}
    v_lshl_add_u32 v{T+6}, v{T+3}, 3, v{T+6}
    s_add_u32 s8, s6, {QF}
    s_add_u32 s9, s6, {QF + 4096}
    s_add_u32 s10, s6, {QF + 8192}
    """)
    for m in range(4):
        A(f"buffer_store_dwordx4 v[{B2+4*m}:{B2+4*m+3}], v{T+5}, s[52:55], s{8 + m//2} offen offset:{(m%2)*2048}")
    A(f"buffer_store_dwordx2 v[{B2+16}:{B2+17}], v{T+6}, s[52:55], s10 offen")
    A("s_branch L_k1_fin")
    A("L_k1_q_poison:")
    A(f"""
    s_mul_i32 s4, s2, 3
    s_add_u32 s4, s4, s{WV}
    s_sub_u32 s4, s4, 5                       ; 0..299
    s_mul_i32 s5, s4, 10240
    s_add_u32 s5, s5, {XCH}
    v_mov_b32 v{X}, -1
    v_mov_b32 v{X+1}, -1
    v_mov_b32 v{X+2}, -1
    v_mov_b32 v{X+3}, -1
    """)
    for j in range(10):
        if j % 4 == 0: A(f"s_add_u32 s6, s5, {j*1024}")
        A(f"buffer_store_dwordx4 v[{X}:{X+3}], v{vL16}, s[52:55], s6 offen offset:{(j%4)*1024}")
    A("""
    s_waitcnt vmcnt(10)
    s_barrier
    s_branch L_k1_fin
    """)

    A("L_k1_roleC:")
    A(f"""
    s_sub_u32 s4, s2, {C0}
    s_lshl_b32 s4, s4, 2
    s_and_b32 s5, s{WV}, 3
    s_add_u32 s4, s4, s5
    s_cmp_ge_u32 s4, 286
    s_cselect_b32 s7, 1, 0                    ; batch
    s_mul_i32 s6, s7, 286
    s_sub_u32 s4, s4, s6
    s_mul_i32 s8, s7, 1152000
    """)
    srd_off(A, 40, PX, 8, 1152000); srd(A, 44, PWUP, 82944); srd(A, 48, PDW, 864)
    A(f"s_add_u32 s8, s8, {ZF}")
    srd_off(A, 52, PWS, 8, 1152000)
    vT = 7
    A(f"""
    s_mul_i32 s9, s4, 14
    s_sub_u32 s9, s9, 1
    v_add_u32 v{vT}, s9, v{vtok}
    v_mul_i32_i24 v6, 288, v{vT}
    v_lshl_add_u32 v6, v{vg}, 3, v6
    """)
    xloads(40, 6)
    A(f"""
    v_lshlrev_b32 v{T+2}, 2, v0
    buffer_load_dword v{T+3}, v{T+2}, s[48:51], 0 offen
    v_mul_u32_u24 v{T}, 57, v{lane}
    v_lshrrev_b32 v{T}, 10, v{T}              ; L/18
    v_mul_u32_u24 v{T+1}, 288, v{T}
    v_add_u32 v{T+1}, v{T+1}, v{vL16}
    s_mul_i32 s10, s{WV}, 864
    s_mul_i32 s11, s{WV}, 1728
    s_mov_b32 exec_hi, 0x3fffff
    """)
    for k in range(12):
        half, kk = k // 6, k % 6
        A(f"s_add_u32 m0, s10, {half*IMG2 + kk*8*864}")
        A(f"s_add_u32 s62, s11, {half*288 + kk*8*1728}")
        A(f"buffer_load_dwordx4 v{T+1}, s[44:47], s62 offen lds")
    A(f"""
    s_mov_b64 exec, -1
    s_waitcnt vmcnt(12)
    v_lshlrev_b32 v{T+4}, 16, v{T+3}
    v_and_b32 v{T+5}, 0xffff0000, v{T+3}
    v_lshlrev_b32 v{T+2}, 3, v0
    v_cmp_gt_u32 vcc, 216, v0
    s_and_saveexec_b64 s[12:13], vcc
    ds_write_b64 v{T+2}, v[{T+4}:{T+5}] offset:{DWOFF-32768}
    s_mov_b64 exec, s[12:13]
    """.replace(f"v_lshlrev_b32 v{T+2}, 3, v0", f"v_lshlrev_b32 v{T+2}, 3, v0\n    v_add_u32 v{T+2}, 32768, v{T+2}"))
    layernorm_x(A, X, XA, T)
    A(f"""
    s_lshr_b32 s12, s{WV}, 2
    s_mul_i32 s13, s12, {IMG2}
    v_add_u32 v{vtr}, s13, v{vtr}
    s_waitcnt vmcnt(0) lgkmcnt(0)
    s_barrier
    """)
    k0 = -2 * math.sqrt(2 / math.pi) * math.log2(math.e)
    k1 = k0 * 0.044715
    A(f"s_mov_b32 s60, {hex(f2u(k1))}")
    A(f"v_mov_b32 v{T+8}, {hex(f2u(k0))}")
    def gelu(t):
        o = []
        r = [ACC + 4*t + i for i in range(4)]
        for i in range(4): o.append(f"v_mul_f32 v{T+i}, v{r[i]}, v{r[i]}")
        for i in range(4): o.append(f"v_fma_f32 v{T+i}, v{T+i}, s60, v{T+8}")
        for i in range(4): o.append(f"v_mul_f32 v{T+i}, v{T+i}, v{r[i]}")
        for i in range(4): o.append(f"v_exp_f32 v{T+i}, v{T+i}")
        for i in range(4): o.append(f"v_add_f32 v{T+i}, 1.0, v{T+i}")
        for i in range(4): o.append(f"v_rcp_f32 v{T+i}, v{T+i}")
        for i in range(4): o.append(f"v_mul_f32 v{r[i]}, v{r[i]}, v{T+i}")
        return o
    gemm(A, trread(vtr), XA, ACC, FB, between=lambda t: gelu(t-2) if t >= 2 else [])
    for x in gelu(7) + gelu(8): A(x)
    A(f"""
    s_and_b32 s5, s{WV}, 3
    s_mul_i32 s5, s5, 9216
    s_add_u32 s5, s5, {UOFF}
    v_add_u32 v{T+9}, s5, v{vL16}
    s_cmp_ge_u32 s{WV}, 4
    s_cbranch_scc1 L_k1_c_g
    """)
    for t in range(9):
        A(f"ds_write_b128 v{T+9}, v[{ACC+4*t}:{ACC+4*t+3}] offset:{t*1024}")
    A("""
    s_waitcnt lgkmcnt(0)
    s_barrier
    s_branch L_k1_fin
    L_k1_c_g:
    """)
    A(f"v_lshlrev_b32 v{T+10}, 4, v{vg}")
    A(f"v_add_u32 v{T+10}, {DWOFF}, v{T+10}")
    DW = 148
    s_, q_, m_, r_ = T, T+1, T+2, T+3
    for t in range(9):
        for i in range(3):
            if t * 3 + i < 15:
                A(f"ds_read_b128 v[{DW+12*t+4*i}:{DW+12*t+4*i+3}], v{T+10} offset:{i*576 + t*64}")
    A(f"v_mov_b32 v{s_}, v{ACC}")
    A(f"v_mul_f32 v{q_}, v{ACC}, v{ACC}")
    for i in range(1, 36):
        A(f"v_add_f32 v{s_}, v{s_}, v{ACC+i}")
        A(f"v_fmac_f32 v{q_}, v{ACC+i}, v{ACC+i}")
    A("s_waitcnt lgkmcnt(0)")
    for t in range(9):
        for i in range(3):
            if t * 3 + i >= 15:
                A(f"ds_read_b128 v[{DW+12*t+4*i}:{DW+12*t+4*i+3}], v{T+10} offset:{i*576 + t*64}")
    reduce4(A, [s_, q_], T+4)
    stats(A, s_, q_, m_, r_)
    for i in range(36):
        A(f"v_fma_f32 v{ACC+i}, v{ACC+i}, v{r_}, v{m_}")
    A("s_waitcnt lgkmcnt(0)")
    CV = 58
    for t in range(9):
        for j in range(4):
            A(f"v_mul_f32 v{CV+4*t+j}, v{DW+12*t+4+j}, v{ACC+4*t+j}")
        for j in range(4):
            A(f"v_fmac_f32_dpp v{CV+4*t+j}, v{ACC+4*t+j}, v{DW+12*t+j} row_shr:1 row_mask:0xf bank_mask:0xf bound_ctrl:0")
        for j in range(4):
            A(f"v_fmac_f32_dpp v{CV+4*t+j}, v{ACC+4*t+j}, v{DW+12*t+8+j} row_shl:1 row_mask:0xf bank_mask:0xf bound_ctrl:0")
    A("s_barrier")
    for t in range(9):
        A(f"ds_read_b128 v[{ACC+4*t}:{ACC+4*t+3}], v{T+9} offset:{t*1024}")
    A(f"""
    v_lshrrev_b32 v{T}, 4, v{vT}
    v_mul_u32_u24 v{T}, 4608, v{T}
    v_and_b32 v{T+1}, 15, v{vT}
    v_lshl_add_u32 v{T+1}, v{vg}, 4, v{T+1}
    v_lshl_add_u32 v{T+2}, v{T+1}, 4, v{T}
    v_lshl_add_u32 v{T+3}, v{T+1}, 3, v{T}
    v_add_u32 v{T+3}, 4096, v{T+3}
    v_add_u32 v{T+4}, -1, v{vtok}
    v_cmp_gt_u32 vcc, 14, v{T+4}
    v_mov_b32 v{T+5}, 0x7fff0000
    v_cndmask_b32 v{T+2}, v{T+5}, v{T+2}, vcc
    v_cndmask_b32 v{T+3}, v{T+5}, v{T+3}, vcc
    """)
    for t in range(9):
        A(f"s_waitcnt lgkmcnt({8-t})")
        for j in range(4):
            A(f"v_mul_f32 v{ACC+4*t+j}, v{ACC+4*t+j}, v{CV+4*t+j}")
        A(f"v_cvt_pk_bf16_f32 v{X+2*t}, v{ACC+4*t}, v{ACC+4*t+1}")
        A(f"v_cvt_pk_bf16_f32 v{X+2*t+1}, v{ACC+4*t+2}, v{ACC+4*t+3}")
        if t % 2 == 1:
            A(f"buffer_store_dwordx4 v[{X+2*t-2}:{X+2*t+1}], v{T+2}, s[52:55], 0 offen offset:{(t//2)*1024}")
    A(f"buffer_store_dwordx2 v[{X+16}:{X+17}], v{T+3}, s[52:55], 0 offen")
    A("s_branch L_k1_fin")

    A("L_k1_roleW:")
    A(f"""
    s_sub_u32 s4, s2, {W0}
    s_lshr_b32 s7, s4, 1                      ; mat
    s_and_b32 s4, s4, 1
    s_mul_i32 s4, s4, 5
    s_add_u32 s4, s4, s{WV}                   ; d tile
    s_mul_i32 s8, s7, 41472
    s_cmp_eq_u32 s7, 0
    s_cselect_b32 s10, s{PWV}, s{PWDN}
    s_cselect_b32 s11, s{PWV+1}, s{PWDN+1}
    """)
    srd(A, 40, 10, 41472); srd(A, 44, PWAO, 41472); srd_off(A, 48, PWM, 8, 41472); srd(A, 52, PWS, WS_USED)
    A(f"""
    s_lshl_b32 s5, s4, 4
    v_add_u32 v6, s5, v{vtok}
    v_mul_u32_u24 v6, 288, v6
    v_lshl_add_u32 v6, v{vg}, 3, v6
    v_lshlrev_b32 v7, 3, v{vg}
    v_add_u32 v7, {143*288}, v7
    """)
    xloads(40, 6, B2)
    xloads(40, 7, X)
    linear_dma(A, 44, 0, vL16, WV)
    linear_dma(A, 48, IMG2, vL16, WV)
    A(f"""
    s_waitcnt vmcnt(0)
    s_barrier
    s_cmp_ge_u32 s{WV}, 5
    s_cbranch_scc1 L_k1_fin
    s_cmp_ge_u32 s4, 9
    s_cbranch_scc1 L_k1_fin
    s_cmp_lg_u32 s7, 0
    s_cbranch_scc1 L_k1_w2
    """)
    for i in range(18):
        A(f"v_lshlrev_b32 v{T}, 16, v{B2+i}")
        A(f"v_and_b32 v{T+1}, 0xffff0000, v{B2+i}")
        A(f"v_lshlrev_b32 v{T+2}, 16, v{X+i}")
        A(f"v_and_b32 v{T+3}, 0xffff0000, v{X+i}")
        A(f"v_sub_f32 v{T}, v{T}, v{T+2}")
        A(f"v_sub_f32 v{T+1}, v{T+1}, v{T+3}")
        A(f"v_cvt_pk_bf16_f32 v{XA+i}, v{T}, v{T+1}")
    gemm(A, trread(vtr), XA, ACC, FB)
    for t in range(9):
        A(f"v_cvt_pk_bf16_f32 v{B2+2*t}, v{ACC+4*t}, v{ACC+4*t+1}")
        A(f"v_cvt_pk_bf16_f32 v{B2+2*t+1}, v{ACC+4*t+2}, v{ACC+4*t+3}")
    A("L_k1_w2:")
    vp, vn = T+8, T+9
    A(f"""
    v_add_u32 v{vn}, {IMG2}, v{vtr}
    v_and_b32 v{T}, 3, v{lane}
    v_lshl_add_u32 v{vp}, v{T}, 3, v{vn}
    """)
    def wmread(t, p, reg):
        if t < 8:
            return f"ds_read_b64_tr_b16 v[{reg}:{reg+1}], v{vp} offset:{p*4608 + (t//2)*64 + (t%2)*8}"
        return f"ds_read_b64_tr_b16 v[{reg}:{reg+1}], v{vn} offset:{p*4608 + 256}"
    gemm(A, wmread, B2, ACC2, FB, swap=True)
    A(f"""
    s_lshr_b32 s5, s4, 1
    s_lshl_b32 s5, s5, 10
    s_and_b32 s6, s4, 1
    s_lshl_b32 s6, s6, 3
    s_add_u32 s5, s5, s6
    s_add_u32 s5, s5, s8
    s_add_u32 s5, s5, {WF}
    s_cmp_eq_u32 s4, 8
    s_cselect_b32 s6, 3, 4
    v_lshlrev_b32 v{T}, s6, v{lane}
    """)
    for t in range(9):
        A(f"v_cvt_pk_bf16_f32 v{X+2*t}, v{ACC2+4*t}, v{ACC2+4*t+1}")
        A(f"v_cvt_pk_bf16_f32 v{X+2*t+1}, v{ACC2+4*t+2}, v{ACC2+4*t+3}")
        A(f"s_add_u32 s6, s5, {t*4608}")
        A(f"buffer_store_dwordx2 v[{X+2*t}:{X+2*t+1}], v{T}, s[52:55], s6 offen")
    A("L_k1_fin:")
    if stamps:
        A(f"""
        s_waitcnt vmcnt(0)
        s_memrealtime s[72:73]
        s_lshl_b32 s4, s2, 3
        s_add_u32 s4, s4, s{WV}
        s_lshl_b32 s4, s4, 4
        s_add_u32 s4, s4, {STAMP}
        s_waitcnt lgkmcnt(0)
        v_mov_b32 v0, s70
        v_mov_b32 v1, s71
        v_mov_b32 v2, s72
        v_mov_b32 v3, s73
        v_mov_b32 v4, s4
        global_store_dwordx4 v4, v[0:3], s[{PWS}:{PWS+1}]
        """)
    A("L_k1_end:")
    A("s_endpgm")
    return A
```

```python
import sys
from asmlib import *
from k1 import XI, QF, ZF, WF, XCH, WS_USED, STAMP, f2u, srd, srd_off

NSLOT = 4
SLOT = 9216
WAVE_LDS = NSLOT * SLOT
K2_LDS = 4 * WAVE_LDS
K2_WGS = 256

def isvalu(ins): return ins.startswith("v_")
def cost(ins):
    if ins.startswith("v_exp") or ins.startswith("v_permlane"): return 2
    return 1

def place(vcap, vcnt, mcap, streams):
    n = len(vcap)
    FV = [[] for _ in range(n)]; FM = [[] for _ in range(n)]
    vcap = list(vcap); vcnt = list(vcnt); mcap = list(mcap)
    for ops, gaps, firsts in streams:
        if not ops: continue
        val = isvalu(ops[0])
        def avail(g):
            return (min(vcap[g], 2*vcnt[g]) if vcnt[g] > 0 else 0) if val else mcap[g]
        tot = sum(cost(o) for o in ops) if val else len(ops)
        cap = sum(max(avail(g), 0) for g in gaps)
        assert tot <= cap, (tot, cap, ops[0])
        cum = []; c = 0
        for g in gaps:
            c += max(avail(g), 0); cum.append(c)
        gi = 0; used = 0
        for k, o in enumerate(ops):
            co = cost(o) if val else 1
            target = (used + co * 0.5) / tot * cap
            def fits(g):
                return (vcap[g] >= co and vcnt[g] > 0) if val else mcap[g] > 0
            while gi < len(gaps) - 1 and (not fits(gaps[gi]) or cum[gi] < target or (firsts and gi < firsts[k])):
                gi += 1
            g = gaps[gi]
            if val:
                FV[g].append(o); vcap[g] -= co; vcnt[g] -= 1
            else:
                FM[g].append(o); mcap[g] -= 1
            used += co
    return FM, FV

O = 0
SA = 144
PA = 176
aK, aV0, aV1, vL16, lane, vg, vq = 192, 193, 194, 195, 196, 197, 198
T = 200
Q = 0; KF = 72; VF = 108; WA = 144
def Oreg(sub, t): return O + (sub*9 + t)*4
def vr(b, n): return f"v[{b}:{b+n-1}]"
def ar(b, n): return f"a[{b}:{b+n-1}]"

def dma(slot, j):
    out = []
    grp = j // 4
    if j % 4 == 0:
        out.append(f"s_add_u32 m0, s24, {slot*SLOT + grp*4096}")
        out.append(f"s_add_u32 s13, s12, {grp*4096}")
    out.append(f"buffer_load_dwordx4 v{vL16}, s[8:11], s13 offen offset:{(j%4)*1024} lds")
    return out
def kread(slot, st):
    return f"ds_read_b128 {ar(KF+4*st, 4)}, v{aK} offset:{slot*SLOT + st*1024}"
def vread(slot, t, u):
    return f"ds_read_b64_tr_b16 {ar(VF+4*t+2*u, 2)}, v{aV0 if u == 0 else aV1} offset:{slot*SLOT + t*1024}"
def qk(q, st):
    S = SA + 16*q
    c = "0" if st == 0 else vr(S, 16)
    return f"v_mfma_f32_32x32x16_bf16 {vr(S,16)}, {ar(KF+4*st,4)}, {ar(Q+36*q+4*st,4)}, {c}"
def pv(q, qs, t, first=False):
    o = Oreg(q*2+qs, t)
    c = "0" if first else vr(o, 4)
    return f"v_mfma_f32_16x16x32_bf16 {vr(o,4)}, {ar(VF+4*t,4)}, {vr(PA+8*q+4*qs,4)}, {c}"
def sm(q):
    S = SA + 16*q; P = PA + 8*q
    ops = []
    order = [0, 4, 1, 5, 2, 6, 3, 7]
    for n, j in enumerate(order):
        ops.append(f"v_exp_f32 v{S+2*j}, v{S+2*j}")
        ops.append(f"v_exp_f32 v{S+2*j+1}, v{S+2*j+1}")
        if n >= 1:
            jj = order[n-1]
            ops.append(f"v_cvt_pk_bf16_f32 v{P+jj}, v{S+2*jj}, v{S+2*jj+1}")
        if n >= 4 and n % 2 == 0:
            i = (n - 4) // 2
            ops.append(f"v_permlane16_swap_b32 v{P+i}, v{P+i+4}")
    ops.append(f"v_permlane16_swap_b32 v{P+2}, v{P+6}")
    ops.insert(len(ops) - 1, f"v_cvt_pk_bf16_f32 v{P+7}, v{S+14}, v{S+15}")
    ops.append(f"v_permlane16_swap_b32 v{P+3}, v{P+7}")
    return ops

def body(A, sl, first, second, nW, wl=()):
    qkA = [qk(0, st) for st in range(9)]; qkB = [qk(1, st) for st in range(9)]
    pvB = [pv(1, qs, t, second) for t in range(9) for qs in range(2)]
    pvA = [pv(0, qs, t, first) for t in range(9) for qs in range(2)]
    M = qkA + pvB + qkB + pvA
    P1 = list(range(0, 9)); P2 = list(range(9, 27)); P3 = list(range(27, 36)); P4 = list(range(36, 54))
    is32 = [True]*9 + [False]*18 + [True]*9 + [False]*18
    vcap = [4 if x else 2 for x in is32]; vcnt = [4 if x else 1 for x in is32]; mcap = [2 if x else 1 for x in is32]
    streams = []
    vm = 9*(NSLOT-2) + (nW if first else 0)
    streams.append(([f"s_waitcnt lgkmcnt(0) vmcnt({vm})"], [P3[-1]], None))
    streams.append((["s_waitcnt lgkmcnt(0)"], [P4[-1]], None))
    streams.append((["s_add_u32 s14, s14, 1", "s_cmp_ge_u32 s14, s15"], [P4[-3], P4[-2]], [0, 1]))
    vcap[P4[-1]] = 0; vcnt[P4[-1]] = 0
    streams.append((sm(0), P2[5:] + P3[:-1], None))
    streams.append((sm(1), P4[5:] + P1[:-1], None))
    vl = [vread(sl, t, u) for t in range(9) for u in range(2)]
    streams.append((vl, P2[1:] + P3[:-2], [2*t for t in range(9) for u in range(2)]))
    streams.append(([kread((sl+1) % NSLOT, st) for st in range(9)], P4[:-5], None))
    dl = []
    for j in range(9): dl += dma((sl + NSLOT - 1) % NSLOT, j)
    dl.append("s_add_u32 s12, s12, 9216")
    streams.append((dl, P1 + P2 + P3[:-1], None))
    FM, FV = place(vcap, vcnt, mcap, streams)
    tailB = [x for g in P1 for x in FV[g]]
    if first:
        kw = 0
        for g in P1:
            A(M[g]);  [A(x) for x in FM[g]]
            n = (len(wl) * (g + 1)) // 9
            for x in wl[kw:n]: A(x)
            kw = n
        mem = [x for g in P2 + P3[:-1] for x in FM[g]]
        val = sm(0)
        km = 0; kv = 0
        for i, g in enumerate(P3):
            A(M[g])
            m = (len(mem) * (i + 1)) // 8 if i < 8 else len(mem)
            for x in mem[km:m]: A(x)
            km = max(km, m)
            if i >= 2:
                n = min(len(val), kv + 3)
                for x in val[kv:n]: A(x)
                kv = n
        for x in val[kv:]: A(x)
        for x in FM[P3[-1]]: A(x)
        for g in P4:
            A(M[g]); [A(x) for x in FM[g] + FV[g]]
    else:
        for g in range(len(M)):
            A(M[g]); [A(x) for x in FM[g] + FV[g]]
    return tailB

def gen_k2(name, stamps=False):
    A = Asm()
    PX, POUT, PWS = 16, 18, 20
    WV = 3
    A(f"""
    s_cmp_ge_u32 s2, {K2_WGS}
    s_cbranch_scc1 L_k2_end
    s_load_dwordx2 s[16:17], s[0:1], 0
    s_load_dwordx2 s[18:19], s[0:1], 72
    s_load_dwordx2 s[20:21], s[0:1], 88
    s_lshr_b32 s4, s2, 3
    s_lshl_b32 s4, s4, 1
    s_bfe_u32 s5, s2, 0x10001
    s_add_u32 s4, s4, s5                 ; q block 0..63
    s_cmp_ge_u32 s4, 63
    s_cbranch_scc1 L_k2_end
    s_and_b32 s5, s2, 1                  ; half
    s_bfe_u32 s6, s2, 0x10002            ; batch
    v_lshrrev_b32 v{T}, 6, v0
    v_and_b32 v{lane}, 63, v0
    v_readfirstlane_b32 s{WV}, v{T}
    v_lshlrev_b32 v{vL16}, 4, v{lane}
    s_lshl_b32 s7, s5, 2
    s_add_u32 s7, s7, s{WV}              ; w8
    s_lshl_b32 s22, s7, 4
    s_sub_i32 s23, s7, 5
    s_max_i32 s23, s23, 0
    s_sub_u32 s22, s22, s23
    s_cmp_ge_u32 s7, 5
    s_cselect_b32 s15, 15, 16
    s_mul_i32 s23, s6, 125
    s_add_u32 s22, s22, s23
    s_mul_i32 s22, s22, 9216
    s_add_u32 s22, s22, {XI}
    s_mul_i32 s24, s{WV}, {WAVE_LDS}
    s_mul_i32 s25, s6, 1152000
    s_lshl_b32 s26, s4, 1
    s_add_u32 s27, s26, s5
    s_xor_b32 s26, s27, 1
    s_waitcnt lgkmcnt(0)
    """)
    if stamps: A("s_memrealtime s[70:71]")
    A(f"""
    s_add_u32 s8, s{PWS}, s22
    s_addc_u32 s9, s{PWS+1}, 0
    s_mul_i32 s10, s15, 9216
    s_mov_b32 s11, 0x20000
    s_mov_b32 s12, 0
    """)
    for j in range(9):
        for x in dma(0, j): A(x)
    A("s_add_u32 s12, s12, 9216")
    A(f"s_add_u32 s28, s25, {QF}")
    srd_off(A, 40, PWS, 28, 1152000)
    A(f"v_add_u32 v{T}, 4096, v{vL16}")
    A(f"v_add_u32 v{T+1}, 8192, v{vL16}")
    A("s_mul_i32 s28, s26, 9216")
    A("s_mul_i32 s29, s27, 9216")
    for q in range(2):
        for st in range(9):
            vo = [vL16, T, T+1][st // 4]
            A(f"buffer_load_dwordx4 {ar(Q+36*q+4*st,4)}, v{vo}, s[40:43], s{28+q} offen offset:{(st%4)*1024}")
    for tl in range(1, NSLOT-1):
        for j in range(9):
            for x in dma(tl, j): A(x)
        A("s_add_u32 s12, s12, 9216")
    srd(A, 44, PWS, WS_USED)
    A(f"v_lshlrev_b32 v{T+2}, 3, v{lane}")
    A(f"v_add_u32 v{T+2}, 4096, v{T+2}")
    A(f"s_mul_i32 s30, s{WV}, 9216")
    nW = 0; wl = []
    for mat in range(2):
        for i in range(3):
            if i < 2: wl.append(f"s_add_u32 s31, s30, {WF + mat*41472 + i*4608}")
            else: wl.append(f"s_mov_b32 s31, {WF + mat*41472 + 8*4608}")
            b = WA + (mat*3 + i)*18
            for ks in range(4):
                wl.append(f"buffer_load_dwordx4 {ar(b+4*ks,4)}, v{vL16}, s[44:47], s31 offen offset:{ks*1024}"); nW += 1
            wl.append(f"buffer_load_dwordx2 {ar(b+16,2)}, v{T+2}, s[44:47], s31 offen"); nW += 1
    t1, t2, t3, t4 = T+4, T+5, T+6, T+7
    A(f"""
    v_lshrrev_b32 v{vg}, 4, v{lane}
    v_and_b32 v{vq}, 15, v{lane}
    v_and_b32 v{t1}, 31, v{lane}
    v_lshrrev_b32 v{t2}, 5, v{lane}
    v_bfe_u32 v{t3}, v{lane}, 4, 1
    v_mul_u32_u24 v{t3}, 12, v{t3}
    v_xor_b32 v{t1}, v{t1}, v{t3}
    v_lshlrev_b32 v{t3}, 3, v{t2}
    v_xor_b32 v{t1}, v{t1}, v{t3}
    v_lshl_add_u32 v{t1}, v{t2}, 5, v{t1}
    v_lshlrev_b32 v{aK}, 4, v{t1}
    v_add_u32 v{aK}, s24, v{aK}
    v_bfe_u32 v{t1}, v{lane}, 4, 1
    v_bfe_u32 v{t3}, v{lane}, 2, 2
    v_lshl_add_u32 v{t3}, v{t1}, 4, v{t3}
    v_lshl_add_u32 v{t3}, v{t2}, 2, v{t3}
    v_mul_u32_u24 v{t1}, 12, v{t1}
    v_xor_b32 v{t3}, v{t3}, v{t1}
    v_bfe_u32 v{t1}, v{lane}, 1, 1
    v_lshlrev_b32 v{t4}, 3, v{t1}
    v_xor_b32 v{t3}, v{t3}, v{t4}
    v_lshl_add_u32 v{t3}, v{t1}, 5, v{t3}
    v_lshlrev_b32 v{t3}, 4, v{t3}
    v_and_b32 v{t4}, 1, v{lane}
    v_lshl_add_u32 v{t3}, v{t4}, 3, v{t3}
    v_add_u32 v{aV0}, s24, v{t3}
    v_xor_b32 v{aV1}, 128, v{aV0}
    s_mov_b32 s14, 0
    s_waitcnt vmcnt({18 + 9*(NSLOT-2)})
    """)
    for st in range(9): A(kread(0, st))
    A(f"s_waitcnt vmcnt({9*(NSLOT-2)}) lgkmcnt(0)")
    if stamps: A("s_memrealtime s[74:75]")
    body(A, 0, True, False, nW, wl)
    body(A, 1, False, True, nW)
    A("s_branch L_k2_s2")
    A(".p2align 6")
    A("L_k2_loop:")
    body(A, 1, False, False, nW)
    A("s_cbranch_scc1 L_k2_done")
    A("L_k2_s2:")
    for sl in [2, 3, 0]:
        tailB = body(A, sl, False, False, nW)
        A("s_cbranch_scc1 L_k2_done" if sl != 0 else "s_cbranch_scc0 L_k2_loop")
    A("L_k2_done:")
    if stamps: A("s_memrealtime s[76:77]")
    ZR = Q
    XR = T + 40
    A(f"s_add_u32 s28, s25, {ZF}")
    srd_off(A, 40, PWS, 28, 1152000)
    srd_off(A, 48, PX, 25, 1152000)
    srd_off(A, 52, POUT, 25, 1152000)
    A(f"s_mul_i32 s28, s27, 9216")
    A(f"s_add_u32 s29, s28, 4608")
    A(f"s_waitcnt vmcnt(0)")
    for sg in range(2):
        for ks in range(4):
            A(f"buffer_load_dwordx4 {ar(ZR+18*sg+4*ks,4)}, v{vL16}, s[40:43], s{28+sg} offen offset:{ks*1024}")
        A(f"buffer_load_dwordx2 {ar(ZR+18*sg+16,2)}, v{T+2}, s[40:43], s{28+sg} offen")
    vxo, vx8 = T+8, T+9
    A(f"""
    s_lshl_b32 s28, s27, 5
    v_add_u32 v{vxo}, s28, v{vq}
    v_mul_u32_u24 v{vxo}, 288, v{vxo}
    s_and_b32 s29, s{WV}, 1
    s_mul_i32 s29, s29, 4608
    s_add_u32 s29, s29, 256
    v_lshl_add_u32 v{vx8}, v{vg}, 3, v{vxo}
    v_add_u32 v{vx8}, s29, v{vx8}
    v_lshl_add_u32 v{vxo}, v{vg}, 4, v{vxo}
    s_lshl_b32 s29, s{WV}, 6
    v_add_u32 v{vxo}, s29, v{vxo}
    s_mov_b32 s29, 4608
    """)
    A(f"buffer_load_dwordx4 {vr(XR,4)}, v{vxo}, s[48:51], 0 offen")
    A(f"buffer_load_dwordx4 {vr(XR+4,4)}, v{vxo}, s[48:51], s29 offen")
    A(f"buffer_load_dwordx2 {vr(XR+8,2)}, v{vx8}, s[48:51], 0 offen")
    for x in tailB: A(x)
    ID = T+10
    A(f"""
    v_lshlrev_b32 v{T+12}, 2, v{vg}
    v_sub_u32 v{T+12}, v{vq}, v{T+12}
    v_mov_b32 v{T+13}, 0x3f80
    v_mov_b32 v{T+14}, 0x3f800000
    v_cmp_eq_u32 vcc, 0, v{T+12}
    v_cndmask_b32 v{ID}, 0, v{T+13}, vcc
    v_cmp_eq_u32 vcc, 1, v{T+12}
    v_cndmask_b32 v{ID}, v{ID}, v{T+14}, vcc
    v_cmp_eq_u32 vcc, 2, v{T+12}
    v_cndmask_b32 v{ID+1}, 0, v{T+13}, vcc
    v_cmp_eq_u32 vcc, 3, v{T+12}
    v_cndmask_b32 v{ID+1}, v{ID+1}, v{T+14}, vcc
    v_add_u32 v{T+12}, s24, v{vL16}
    v_lshlrev_b32 v{T+13}, 3, v{lane}
    v_add_u32 v{T+13}, s24, v{T+13}
    """)
    vob, vob8 = T+12, T+13
    PK = SA
    A(f"""
    s_cmp_eq_u32 s{WV}, 1
    s_cbranch_scc1 L_k2_e1
    s_cmp_eq_u32 s{WV}, 2
    s_cbranch_scc1 L_k2_e2
    s_cmp_eq_u32 s{WV}, 3
    s_cbranch_scc1 L_k2_e3
    """)
    RB = SA
    for w in range(4):
        A(f"L_k2_e{w}:")
        pvs = [pv(1, qs, t) for t in range(9) for qs in range(2)]
        def pack(sub, wd, tmp):
            o = []
            for h in range(2):
                r = Oreg(sub, 2*wd + h)
                o.append(f"v_cvt_pk_bf16_f32 v{tmp+2*h}, v{r}, v{r+1}")
                o.append(f"v_cvt_pk_bf16_f32 v{tmp+2*h+1}, v{r+2}, v{r+3}")
            i = (wd - w - 1) % 4
            o.append(f"ds_write_b128 v{vob}, {vr(tmp,4)} offset:{i*4608 + sub*1024}")
            return o
        def pack8(wd, tmp):
            r = Oreg(wd, 8); i = (wd - w - 1) % 4
            return [f"v_cvt_pk_bf16_f32 v{tmp}, v{r}, v{r+1}", f"v_cvt_pk_bf16_f32 v{tmp+1}, v{r+2}, v{r+3}",
                    f"ds_write_b64 v{vob8}, {vr(tmp,2)} offset:{i*4608 + 4096}"]
        others = [wd for wd in range(4) if wd != w]
        early = []; k = 0
        for sub in range(2):
            for wd in others:
                early += pack(sub, wd, PK + 4*(k % 4)); k += 1
        for wd in others:
            if wd < 2: early += pack8(wd, PK + 4*(k % 4)); k += 1
        ke = 0
        for i, m in enumerate(pvs):
            A(m)
            n = (len(early) * (i + 1)) // 18
            for x in early[ke:n]: A(x)
            ke = n
        for sub in range(2, 4):
            for wd in others:
                for x in pack(sub, wd, PK + 4*(k % 4)): A(x)
                k += 1
        for wd in others:
            if wd >= 2:
                for x in pack8(wd, PK + 4*(k % 4)): A(x)
                k += 1
        A("s_waitcnt lgkmcnt(0)")
        A("s_barrier")
        for n_, ws_ in enumerate(others):
            i = (w - ws_ - 1) % 4
            A(f"v_add_u32 v{T+14+n_}, {ws_*WAVE_LDS + i*4608}, v{vL16}")
        A(f"v_lshlrev_b32 v{T+17}, 3, v{lane}")
        R8 = T + 18
        for sub in range(4):
            for n_ in range(3):
                A(f"ds_read_b128 {vr(RB + (sub*3+n_)*4, 4)}, v{T+14+n_} offset:{sub*1024}")
        for n_, ws_ in enumerate(others):
            i = (w - ws_ - 1) % 4
            off = ws_*WAVE_LDS + i*4608 + 4096
            if off < 65536:
                A(f"ds_read_b64 {vr(R8+2*n_,2)}, v{T+17} offset:{off}")
            else:
                A(f"v_add_u32 v{T+24}, {off}, v{T+17}")
                A(f"ds_read_b64 {vr(R8+2*n_,2)}, v{T+24}")
        for sub in range(4):
            for n_ in range(3):
                A(f"s_waitcnt lgkmcnt({14 - (sub*3+n_)})")
                for h in range(2):
                    o = vr(Oreg(sub, 2*w+h), 4)
                    A(f"v_mfma_f32_16x16x16_bf16 {o}, {vr(ID,2)}, {vr(RB+(sub*3+n_)*4+2*h,2)}, {o}")
            if sub == 1:
                pass
        A("s_waitcnt lgkmcnt(0)")
        for n_ in range(3):
            o = vr(Oreg(w, 8), 4)
            A(f"v_mfma_f32_16x16x16_bf16 {o}, {vr(ID,2)}, {vr(R8+2*n_,2)}, {o}")
        SB = T + 26
        A(f"s_xor_b32 s28, s2, 1")
        A(f"s_mul_i32 s28, s28, 10240")
        A(f"s_add_u32 s28, s28, {XCH + w*2048}")
        for sub in range(2):
            for h in range(2):
                r = Oreg(sub, 2*w+h)
                A(f"v_cvt_pk_bf16_f32 v{SB+4*sub+2*h}, v{r}, v{r+1}")
                A(f"v_cvt_pk_bf16_f32 v{SB+4*sub+2*h+1}, v{r+2}, v{r+3}")
            for j in range(4): A(f"v_min_u32 v{SB+4*sub+j}, -2, v{SB+4*sub+j}")
            A(f"buffer_store_dwordx4 {vr(SB+4*sub,4)}, v{vL16}, s[44:47], s28 offen offset:{sub*1024} sc0 sc1")
        if w < 2:
            r = Oreg(w, 8)
            A(f"s_add_u32 s28, s28, {8192 + w*512 - w*2048}")
            A(f"v_cvt_pk_bf16_f32 v{SB+8}, v{r}, v{r+1}")
            A(f"v_cvt_pk_bf16_f32 v{SB+9}, v{r+2}, v{r+3}")
            for j in range(2): A(f"v_min_u32 v{SB+8+j}, -2, v{SB+8+j}")
            A(f"buffer_store_dwordx2 {vr(SB+8,2)}, v{T+17}, s[44:47], s28 offen sc0 sc1")
        jobs = [(0, 0), (1, 0), (0, 1), (1, 1)] + ([(2, w)] if w < 2 else [])
        AZ = 40; AT = 8
        nst = 3 if w < 2 else 2
        A(f"s_waitcnt vmcnt({nst})")
        def fgemm(acc, mat, Breg, isag):
            for s_ in range(5):
                n = 4 if s_ < 4 else 2
                op = "v_mfma_f32_16x16x32_bf16" if s_ < 4 else "v_mfma_f32_16x16x16_bf16"
                for jn, (i, sg) in enumerate(jobs):
                    a_ = vr(acc + 4*jn, 4)
                    b_ = (ar if isag else vr)(Breg + (18 if isag else 20)*sg + 4*s_, n)
                    A(f"{op} {a_}, {ar(WA+(mat*3+i)*18+4*s_, n)}, {b_}, {'0' if s_ == 0 else a_}")
        fgemm(AZ, 1, ZR, True)
        A(f"s_mul_i32 s28, s2, 10240")
        A(f"s_add_u32 s28, s28, {XCH + w*2048}")
        A(f"s_add_u32 s29, s28, {8192 + (w-2)*512 - w*2048}")
        A(f"s_mov_b32 s30, 0")
        A(f"L_k2_poll{w}:")
        IB = SB
        A(f"buffer_load_dwordx4 {vr(IB,4)}, v{vL16}, s[44:47], s28 offen sc0 sc1")
        A(f"buffer_load_dwordx4 {vr(IB+4,4)}, v{vL16}, s[44:47], s28 offen offset:1024 sc0 sc1")
        if w >= 2: A(f"buffer_load_dwordx2 {vr(IB+8,2)}, v{T+17}, s[44:47], s29 offen sc0 sc1")
        A(f"s_add_u32 s30, s30, 1")
        A(f"s_waitcnt vmcnt(0)")
        A(f"v_max3_u32 v{T+24}, v{IB}, v{IB+1}, v{IB+2}")
        A(f"v_max3_u32 v{T+25}, v{IB+3}, v{IB+4}, v{IB+5}")
        A(f"v_max3_u32 v{T+24}, v{T+24}, v{IB+6}, v{IB+7}")
        if w >= 2: A(f"v_max3_u32 v{T+25}, v{T+25}, v{IB+8}, v{IB+9}")
        A(f"v_max_u32 v{T+24}, v{T+24}, v{T+25}")
        A(f"v_cmp_eq_u32 vcc, -1, v{T+24}")
        A(f"s_cmp_ge_u32 s30, 0x40000")
        A(f"s_cbranch_scc1 L_k2_got{w}")
        A(f"s_cbranch_vccnz L_k2_poll{w}")
        A(f"L_k2_got{w}:")
        for sg in range(2):
            for h in range(2):
                o = vr(Oreg(2+sg, 2*w+h), 4)
                A(f"v_mfma_f32_16x16x16_bf16 {o}, {vr(ID,2)}, {vr(IB+4*sg+2*h,2)}, {o}")
        if w >= 2:
            o = vr(Oreg(w, 8), 4)
            A(f"v_mfma_f32_16x16x16_bf16 {o}, {vr(ID,2)}, {vr(IB+8,2)}, {o}")
        CM = 16384
        for sg in range(2):
            for h in range(2):
                r = Oreg(2+sg, 2*w+h)
                A(f"v_cvt_pk_bf16_f32 v{PK+4*sg+2*h}, v{r}, v{r+1}")
                A(f"v_cvt_pk_bf16_f32 v{PK+4*sg+2*h+1}, v{r+2}, v{r+3}")
            A(f"ds_write_b128 v{vL16}, {vr(PK+4*sg,4)} offset:{CM + sg*4608 + w*1024}")
        if w >= 2:
            r = Oreg(w, 8)
            A(f"v_cvt_pk_bf16_f32 v{PK+8}, v{r}, v{r+1}")
            A(f"v_cvt_pk_bf16_f32 v{PK+9}, v{r+2}, v{r+3}")
            A(f"ds_write_b64 v{T+17}, {vr(PK+8,2)} offset:{CM + (w-2)*4608 + 4096}")
        A("s_waitcnt lgkmcnt(0)")
        A("s_barrier")
        FBR = 72
        for sg in range(2):
            A(f"ds_read_b64 {vr(FBR+20*sg+16,2)}, v{T+17} offset:{CM + sg*4608 + 4096}")
        for ks in range(4):
            for sg in range(2):
                A(f"ds_read_b128 {vr(FBR+20*sg+4*ks,4)}, v{vL16} offset:{CM + sg*4608 + ks*1024}")
        A("s_waitcnt lgkmcnt(8)")
        L = T + 14
        for sg in range(2): A(f"v_and_b32 v{L+sg}, 0xffff0000, v{FBR+20*sg+17}")
        for sg in range(2): A(f"v_mov_b32 v{L+2+sg}, v{L+sg}")
        for sg in range(2): A(f"v_permlane32_swap_b32 v{L+2+sg}, v{L+sg}")
        for sg in range(2): A(f"v_mov_b32 v{L+2+sg}, v{L+sg}")
        for sg in range(2): A(f"v_permlane16_swap_b32 v{L+2+sg}, v{L+sg}")
        for sg in range(2): A(f"v_rcp_f32 v{L+sg}, v{L+sg}")
        A("s_waitcnt lgkmcnt(0)")
        fgemm(AT, 0, FBR, False)
        def xz(jn, xreg, hi):
            pass
        U = T + 26
        for jn, (i, sg) in enumerate(jobs):
            xb = XR + 4*sg + 2*i if i < 2 else XR + 8
            for j in range(2):
                A(f"v_lshlrev_b32 v{U}, 16, v{xb+j}")
                A(f"v_and_b32 v{U+1}, 0xffff0000, v{xb+j}")
                A(f"v_add_f32 v{AZ+4*jn+2*j}, v{AZ+4*jn+2*j}, v{U}")
                A(f"v_add_f32 v{AZ+4*jn+2*j+1}, v{AZ+4*jn+2*j+1}, v{U+1}")
        A(f"s_cmp_ge_u32 s27, 125")
        A(f"s_cbranch_scc1 L_k2_fin")
        for jn, (i, sg) in enumerate(jobs):
            for j in range(4):
                A(f"v_fma_f32 v{AZ+4*jn+j}, v{AT+4*jn+j}, v{L+sg}, v{AZ+4*jn+j}")
            dst = PK + 4*sg + 2*i if i < 2 else PK + 8
            A(f"v_cvt_pk_bf16_f32 v{dst}, v{AZ+4*jn}, v{AZ+4*jn+1}")
            A(f"v_cvt_pk_bf16_f32 v{dst+1}, v{AZ+4*jn+2}, v{AZ+4*jn+3}")
            if i == 1:
                so = "0" if sg == 0 else "s29"
                if sg == 1: A("s_mov_b32 s29, 4608")
                A(f"buffer_store_dwordx4 {vr(PK+4*sg,4)}, v{vxo}, s[52:55], {so} offen")
            if i == 2:
                A(f"buffer_store_dwordx2 {vr(PK+8,2)}, v{vx8}, s[52:55], 0 offen")
        if w < 3: A("s_branch L_k2_fin")
    A("L_k2_fin:")
    if stamps:
        A(f"""
        s_waitcnt vmcnt(0)
        s_memrealtime s[72:73]
        s_lshl_b32 s4, s2, 2
        s_add_u32 s4, s4, s{WV}
        s_lshl_b32 s5, s4, 4
        s_add_u32 s5, s5, {STAMP + 0x10000}
        s_waitcnt lgkmcnt(0)
        v_mov_b32 v0, s70
        v_mov_b32 v1, s71
        v_mov_b32 v2, s72
        v_mov_b32 v3, s73
        v_mov_b32 v4, s5
        global_store_dwordx4 v4, v[0:3], s[{PWS}:{PWS+1}]
        v_mov_b32 v0, s74
        v_mov_b32 v1, s75
        v_mov_b32 v2, s76
        v_mov_b32 v3, s77
        v_add_u32 v4, 0x10000, v4
        global_store_dwordx4 v4, v[0:3], s[{PWS}:{PWS+1}]
        """)
    A("L_k2_end:")
    A("s_endpgm")
    return A
```

```python
import sys
sys.path.insert(0, "gen")
from asmlib import *
import hazard, k1, k2
HDR = open("standalone__conformer_family_branchformer__speech.s.ref").read().split("; Override launch")[0]

def finish(A, tag):
    lines, probs = hazard.fix(A.lines, auto=True, timed=False)
    n = sum(1 for a in lines if a.strip().startswith("s_nop")) - sum(1 for a in A.lines if a.strip().startswith("s_nop"))
    print(f"{tag}: {len(lines)} lines, {n} nops inserted", file=sys.stderr)
    return "\n".join(lines) + "\n"

def build(path, stamps=False, only1=False):
    n1, n2 = "bf_prep_kernel", "bf_attn_kernel"
    txt = HDR
    txt += f"; @launch kernel={n1} grid=({k1.K1_WGS},1,1) block=(512,1,1) lds={k1.K1_LDS}\n"
    if not only1:
        txt += f"; @launch kernel={n2} grid=({k2.K2_WGS},1,1) block=(256,1,1) lds={k2.K2_LDS}\n"
    txt += HEADER
    txt += kernel_begin(n1) + finish(k1.gen_k1(n1, stamps), "k1")
    txt += kernel_begin(n2) + finish(k2.gen_k2(n2, stamps), "k2")
    txt += '.section .rodata,"a"\n.p2align 6\n' + kernel_desc(n1, 256, 80, 256) + ".p2align 6\n" + kernel_desc(n2, 512, 80, 256)
    open(path, "w").write(txt)

if __name__ == "__main__":
    build("standalone__conformer_family_branchformer__speech.s")
    build("dbg.s", stamps=True)
    build("k1only.s", stamps=True, only1=True)
```

```python
import sys, math
from asmlib import *
from k1 import f2u, srd, srd_off, reduce4, stats, gemm, SCL
from k2 import place

XI = 0x000000
XT = 0x240000
WF = 0x480000
XCH = 0x4A0000
WS_USED = XCH + 256 * 10240
STAMP = 0x8000000
NWG = 256
SLOT = 9216; SSTR = 36864
SP = 147456
LDS = 163840
WQ_L, WK_L, QX_L = 36864, 78848, 124928
DW_L = SP
FREE1, FREE2 = 2*SSTR + 2*SLOT, 2*SSTR + 3*SLOT
CM = 3*SSTR
DUMMY = SP + 11264

lane, vg, vq, vL16, vL8, vtr = 208, 209, 210, 211, 212, 213
aK, aV0, aV1 = (214, 215), (216, 217), (218, 219)
WUO = 220
O = 0; SA = 144; PA = 176
Q = 0; KF = 72; VF = 108; WA = 144
PX, PWQ, PWK, PWV, PWAO, PWUP, PDW, PWDN, PWM, POUT, PDBG, PWS = 16, 18, 20, 22, 24, 26, 28, 30, 32, 34, 36, 38
WV = 3
sQB, sHALF, sB, sW8 = 4, 5, 6, 7
sLB, sBOFF, sTA, sTB = 64, 65, 66, 67
def Oreg(sub, t): return O + (sub*9 + t)*4
def vr(b, n): return f"v[{b}:{b+n-1}]"
def ar(b, n): return f"a[{b}:{b+n-1}]"
SC = " sc1"

def dma(slot, j):
    out = []
    grp = j // 4
    if j % 4 == 0:
        out.append(f"s_add_u32 m0, s{sLB}, {slot*SSTR + grp*4096}")
        out.append(f"s_add_u32 s13, s12, {grp*4096}")
    out.append(f"buffer_load_dwordx4 v{vL16}, s[8:11], s13 offen offset:{(j%4)*1024}{SC} lds")
    return out
def dma_wup(slot, j):
    return [f"s_add_u32 m0, s{sLB}, {slot*SSTR + j*1024}",
            f"buffer_load_dwordx4 v{WUO+j}, s[56:59], s{68+slot} offen lds"]
def kread(slot, st):
    return f"ds_read_b128 {ar(KF+4*st, 4)}, v{aK[slot//2]} offset:{(slot%2)*SSTR + st*1024}"
def vread(slot, t, u):
    return f"ds_read_b64_tr_b16 {ar(VF+4*t+2*u, 2)}, v{(aV0 if u == 0 else aV1)[slot//2]} offset:{(slot%2)*SSTR + t*1024}"
def qk(q, st):
    S = SA + 16*q
    c = "0" if st == 0 else vr(S, 16)
    return f"v_mfma_f32_32x32x16_bf16 {vr(S,16)}, {ar(KF+4*st,4)}, {ar(Q+36*q+4*st,4)}, {c}"
def pv(q, qs, t, first=False):
    o = Oreg(q*2+qs, t)
    c = "0" if first else vr(o, 4)
    return f"v_mfma_f32_16x16x32_bf16 {vr(o,4)}, {ar(VF+4*t,4)}, {vr(PA+8*q+4*qs,4)}, {c}"
def sm(q):
    S = SA + 16*q; P = PA + 8*q
    ops = []
    order = [0, 4, 1, 5, 2, 6, 3, 7]
    for n, j in enumerate(order):
        ops.append(f"v_exp_f32 v{S+2*j}, v{S+2*j}")
        ops.append(f"v_exp_f32 v{S+2*j+1}, v{S+2*j+1}")
        if n >= 1:
            jj = order[n-1]
            ops.append(f"v_cvt_pk_bf16_f32 v{P+jj}, v{S+2*jj}, v{S+2*jj+1}")
        if n >= 4 and n % 2 == 0:
            i = (n - 4) // 2
            ops.append(f"v_permlane16_swap_b32 v{P+i}, v{P+i+4}")
    ops.append(f"v_cvt_pk_bf16_f32 v{P+7}, v{S+14}, v{S+15}")
    ops.append(f"v_permlane16_swap_b32 v{P+2}, v{P+6}")
    ops.append(f"v_permlane16_swap_b32 v{P+3}, v{P+7}")
    return ops

def body(A, sl, kind="n", vm=18, dl=None, extra=(), loopctl=(), last=False):
    first = kind == "f"
    qkA = [qk(0, st) for st in range(9)]; qkB = [qk(1, st) for st in range(9)]
    pvB = [pv(1, qs, t, kind == "s") for t in range(9) for qs in range(2)]
    pvA = [pv(0, qs, t, first) for t in range(9) for qs in range(2)]
    M = qkA + pvB + qkB + pvA
    P1 = list(range(0, 9)); P2 = list(range(9, 27)); P3 = list(range(27, 36)); P4 = list(range(36, 54))
    is32 = [True]*9 + [False]*18 + [True]*9 + [False]*18
    big = 1 if extra else 0
    vcap = [4 if x else 2 for x in is32]; vcnt = [4 if x else 1 for x in is32]; mcap = [2 + big if x else 1 + big for x in is32]
    streams = []
    streams.append(([f"s_waitcnt lgkmcnt(0) vmcnt({vm})" if vm is not None else "s_waitcnt lgkmcnt(0)"], [P3[-1]], None))
    if not last:
        streams.append((["s_waitcnt lgkmcnt(0)"], [P4[-1]], None))
    if loopctl:
        streams.append((list(loopctl), [P4[-3], P4[-2]], [0, 1]))
    vcap[P4[-1]] = 0; vcnt[P4[-1]] = 0
    streams.append((sm(0), P2[5:] + P3[:-1], None))
    streams.append((sm(1), P4[5:] + P1[:-1], None))
    vl = [vread(sl, t, u) for t in range(9) for u in range(2)]
    streams.append((vl, P2[1:] + P3[:-2], [2*t for t in range(9) for u in range(2)]))
    if not last:
        streams.append(([kread((sl+1) % 4, st) for st in range(9)], P4[:-5], None))
    if dl is None:
        dl = []
        for j in range(9): dl += dma((sl + 3) % 4, j)
        dl.append("s_add_u32 s12, s12, 9216")
    streams.append((list(dl), P1 + P2 + P3[:-1], None))
    if extra:
        streams.append((list(extra), P4[:-1] if last else P1 + P2 + P3[:-1], None))
    FM, FV = place(vcap, vcnt, mcap, streams)
    tailB = [x for g in P1 for x in FV[g]]
    if first:
        for g in P1:
            A(M[g]);  [A(x) for x in FM[g]]
        mem = [x for g in P2 + P3[:-1] for x in FM[g]]
        val = sm(0)
        km = 0; kv = 0
        for i, g in enumerate(P3):
            A(M[g])
            m = (len(mem) * (i + 1)) // 8 if i < 8 else len(mem)
            for x in mem[km:m]: A(x)
            km = max(km, m)
            if i >= 2:
                n = min(len(val), kv + 3)
                for x in val[kv:n]: A(x)
                kv = n
        for x in val[kv:]: A(x)
        for x in FM[P3[-1]]: A(x)
        for g in P4:
            A(M[g]); [A(x) for x in FM[g] + FV[g]]
    else:
        for g in range(len(M)):
            A(M[g]); [A(x) for x in FM[g] + FV[g]]
    return tailB

def layernorm_x(A, X, XA, T):
    import k1
    k1.layernorm_x(A, X, XA, T)

def stamp(A, on, n):
    if on: A(f"s_memrealtime s[{80+2*n}:{81+2*n}]")

def gen(name, stamps=False, pf=False):
    A = Asm()
    T = 8; X = 20; XA = 40; FB = 58; ACC = 112; B2 = 148; ACC2 = 168
    A(f"""
    s_cmp_ge_u32 s2, {NWG}
    s_cbranch_scc1 L_end
    s_load_dwordx16 s[16:31], s[0:1], 0
    s_load_dwordx8 s[32:39], s[0:1], 64
    v_lshrrev_b32 v{T}, 6, v0
    v_and_b32 v{lane}, 63, v0
    v_readfirstlane_b32 s{WV}, v{T}
    v_lshrrev_b32 v{vg}, 4, v{lane}
    v_and_b32 v{vq}, 15, v{lane}
    v_lshlrev_b32 v{vL16}, 4, v{lane}
    v_lshlrev_b32 v{vL8}, 3, v{lane}
    v_lshrrev_b32 v{T}, 2, v{lane}
    v_mul_u32_u24 v{T}, 288, v{T}
    v_and_b32 v{T+1}, 3, v{lane}
    v_lshl_add_u32 v{vtr}, v{T+1}, 3, v{T}
    s_lshr_b32 s{sQB}, s2, 3
    s_lshl_b32 s{sQB}, s{sQB}, 1
    s_bfe_u32 s5, s2, 0x10001
    s_add_u32 s{sQB}, s{sQB}, s5
    s_and_b32 s{sHALF}, s2, 1
    s_bfe_u32 s{sB}, s2, 0x10002
    s_mul_i32 s{sBOFF}, s{sB}, 1152000
    s_mul_i32 s{sLB}, s{WV}, {SLOT}
    s_lshl_b32 s{sTA}, s{sQB}, 1
    s_add_u32 s{sTB}, s{sTA}, s{sHALF}
    s_xor_b32 s{sTA}, s{sTB}, 1
    s_cmp_ge_u32 s{WV}, 2
    s_cselect_b32 s72, s{sTB}, s{sTA}
    s_and_b32 s73, s{WV}, 1                    ; parity
    s_lshl_b32 s74, s72, 1
    s_add_u32 s74, s74, s73
    s_lshl_b32 s75, s74, 4
    v_add_u32 v6, s75, v{vq}
    v_mul_u32_u24 v6, 288, v6
    v_lshl_add_u32 v6, v{vg}, 3, v6
    s_cmp_ge_u32 s{sQB}, 63
    s_waitcnt lgkmcnt(0)
    s_cbranch_scc1 L_roleW
    """)
    stamp(A, stamps, 0)
    def xloads(srdn, voff, dst, ag=False, so="0", sc=""):
        o = []
        for p in range(9):
            d = (ar if ag else vr)(dst + 2*p, 2)
            o.append(f"buffer_load_dwordx2 {d}, v{voff}, s[{srdn}:{srdn+3}], {so} offen offset:{32*p}{sc}")
        return o
    def linear_dma(srdn, ldsbase):
        A(f"s_lshl_b32 s61, s{WV}, 10")
        for k in range(10):
            A(f"s_add_u32 m0, s61, {ldsbase + k*4096}")
            A(f"s_add_u32 s62, s61, {k*4096}")
            A(f"buffer_load_dwordx4 v{vL16}, s[{srdn}:{srdn+3}], s62 offen lds")
        A(f"s_mov_b32 m0, {ldsbase + 40960}")
        A(f"s_mov_b32 s62, 40960")
        A(f"buffer_load_dwordx4 v{vL16}, s[{srdn}:{srdn+3}], s62 offen lds")
    def trread(vaddr, base=0):
        def rd(t, p, reg):
            return f"ds_read_b64_tr_b16 v[{reg}:{reg+1}], v{vaddr} offset:{base + p*4608 + t*32}"
        return rd
    srd_off(A, 40, PX, sBOFF, 1152000)
    for x in xloads(40, 6, X): A(x)
    if pf:
        A(f"""
        s_getpc_b64 s[60:61]
        L_pc:
        s_lshr_b32 s62, s2, 3
        s_lshl_b32 s62, s62, 2
        s_add_u32 s62, s62, s{WV}
        s_mul_i32 s63, s62, 205
        s_lshr_b32 s63, s63, 10
        s_mul_i32 s63, s63, 5
        s_sub_u32 s62, s62, s63
        s_lshl_b32 s62, s62, 13
        v_lshlrev_b32 v5, 7, v{lane}
        v_add_u32 v5, s62, v5
        v_min_u32 v5, 40000, v5
        global_load_dword v5, v5, s[60:61]
        """)
    srd(A, 44, PWQ, 41472); srd(A, 48, PWK, 41472); srd(A, 52, PWS, WS_USED); srd(A, 56, PDW, 864)
    A(f"v_lshlrev_b32 v{T+2}, 2, v0")
    A(f"buffer_load_dword v7, v{T+2}, s[56:59], 0 offen")
    linear_dma(44, WQ_L)
    va1, va2 = T+8, T+9
    A(f"""
    v_lshrrev_b32 v{T}, 2, v{lane}
    v_and_b32 v{T+1}, 3, v{lane}
    v_xor_b32 v{T+1}, v{T+1}, v{vg}
    v_lshlrev_b32 v{T+1}, 4, v{T+1}
    v_mul_u32_u24 v{va2}, 288, v{T}
    v_add_u32 v{va2}, v{va2}, v{T+1}
    v_and_b32 v{T+2}, 3, v{T}
    v_lshl_add_u32 v{T+2}, v{vg}, 3, v{T+2}
    v_mul_u32_u24 v{va1}, 288, v{T+2}
    v_add_u32 v{va1}, v{va1}, v{T+1}
    s_mul_i32 s60, s{WV}, {32*288}
    s_mul_i32 s61, s{WV}, 10240
    """)
    for par in range(2):
        for s_ in range(5):
            A(f"s_add_u32 m0, s61, {WK_L + (par*5 + s_)*1024}")
            A(f"s_add_u32 s62, s60, {par*4*288 + 64*s_}")
            A(f"buffer_load_dwordx4 v{va1}, s[48:51], s62 offen lds")
    A(f"""
    s_lshl_b32 s61, s{WV}, 10
    s_add_u32 m0, s61, {WK_L + 40*1024}
    s_lshl_b32 s62, s{WV}, 6
    s_add_u32 s62, s62, {128*288}
    buffer_load_dwordx4 v{va2}, s[48:51], s62 offen lds
    s_mov_b32 m0, {WK_L + 44*1024}
    s_mov_b32 s62, {128*288 + 256}
    buffer_load_dwordx4 v{va2}, s[48:51], s62 offen lds
    """)
    ndma = 11 + 12
    A(f"""
    v_mov_b32 v{T+4}, -1
    v_mov_b32 v{T+5}, -1
    v_mov_b32 v{T+6}, -1
    v_mov_b32 v{T+7}, -1
    s_mul_i32 s76, s2, 10240
    s_add_u32 s76, s76, {XCH}
    s_lshl_b32 s60, s{WV}, 11
    s_add_u32 s60, s60, s76
    s_lshl_b32 s61, s73, 9
    s_add_u32 s61, s61, s76
    s_add_u32 s61, s61, 8192
    buffer_store_dwordx4 v[{T+4}:{T+7}], v{vL16}, s[52:55], s60 offen sc1
    buffer_store_dwordx4 v[{T+4}:{T+7}], v{vL16}, s[52:55], s60 offen offset:1024 sc1
    buffer_store_dwordx2 v[{T+4}:{T+5}], v{vL8}, s[52:55], s61 offen sc1
    """)
    t1, t2, t3, t4 = T, T+1, T+2, T+3
    A(f"""
    v_and_b32 v{t1}, 31, v{lane}
    v_lshrrev_b32 v{t2}, 5, v{lane}
    v_bfe_u32 v{t3}, v{lane}, 4, 1
    v_mul_u32_u24 v{t3}, 12, v{t3}
    v_xor_b32 v{t1}, v{t1}, v{t3}
    v_lshlrev_b32 v{t3}, 3, v{t2}
    v_xor_b32 v{t1}, v{t1}, v{t3}
    v_lshl_add_u32 v{t1}, v{t2}, 5, v{t1}
    v_lshlrev_b32 v{aK[0]}, 4, v{t1}
    v_add_u32 v{aK[0]}, s{sLB}, v{aK[0]}
    v_add_u32 v{aK[1]}, {2*SSTR}, v{aK[0]}
    v_bfe_u32 v{t1}, v{lane}, 4, 1
    v_bfe_u32 v{t3}, v{lane}, 2, 2
    v_lshl_add_u32 v{t3}, v{t1}, 4, v{t3}
    v_lshl_add_u32 v{t3}, v{t2}, 2, v{t3}
    v_mul_u32_u24 v{t1}, 12, v{t1}
    v_xor_b32 v{t3}, v{t3}, v{t1}
    v_bfe_u32 v{t1}, v{lane}, 1, 1
    v_lshlrev_b32 v{t4}, 3, v{t1}
    v_xor_b32 v{t3}, v{t3}, v{t4}
    v_lshl_add_u32 v{t3}, v{t1}, 5, v{t3}
    v_lshlrev_b32 v{t3}, 4, v{t3}
    v_and_b32 v{t4}, 1, v{lane}
    v_lshl_add_u32 v{t3}, v{t4}, 3, v{t3}
    v_add_u32 v{aV0[0]}, s{sLB}, v{t3}
    v_xor_b32 v{aV1[0]}, 128, v{aV0[0]}
    v_add_u32 v{aV0[1]}, {2*SSTR}, v{aV0[0]}
    v_add_u32 v{aV1[1]}, {2*SSTR}, v{aV1[0]}
    s_movk_i32 s60, 3641
    """)
    for j in range(9):
        A(f"v_add_u32 v{t1}, {64*j}, v{lane}")
        A(f"v_mul_u32_u24 v{t2}, s60, v{t1}")
        A(f"v_lshrrev_b32 v{t2}, 16, v{t2}")
        A(f"v_mul_u32_u24 v{t2}, 288, v{t2}")
        A(f"v_lshl_add_u32 v{WUO+j}, v{t1}, 4, v{t2}")
    A(f"""
    s_lshl_b32 s{sW8}, s{sHALF}, 2
    s_add_u32 s{sW8}, s{sW8}, s{WV}
    s_lshl_b32 s60, s{sW8}, 4
    s_sub_i32 s61, s{sW8}, 5
    s_max_i32 s61, s61, 0
    s_sub_u32 s60, s60, s61
    s_mul_i32 s60, s60, 9216
    s_add_u32 s60, s60, s{sBOFF}
    s_add_u32 s60, s60, {XI}
    s_add_u32 s8, s{PWS}, s60
    s_addc_u32 s9, s{PWS+1}, 0
    s_cmp_ge_u32 s{sW8}, 5
    s_cselect_b32 s10, 15, 16
    s_mul_i32 s10, s10, 9216
    s_mov_b32 s11, 0x20000
    s_mov_b32 s12, 0
    s_waitcnt vmcnt({ndma + 3})
    v_lshlrev_b32 v{T+4}, 16, v7
    v_and_b32 v{T+5}, 0xffff0000, v7
    v_lshlrev_b32 v{T+2}, 3, v0
    v_add_u32 v{T+2}, {DW_L}, v{T+2}
    v_cmp_gt_u32 vcc, 216, v0
    s_and_saveexec_b64 s[60:61], vcc
    ds_write_b64 v{T+2}, v[{T+4}:{T+5}]
    s_mov_b64 exec, s[60:61]
    """)
    stamp(A, stamps, 1)
    layernorm_x(A, X, XA, T)
    vk0, vk1 = T+10, T+11
    A(f"""
    v_lshrrev_b32 v{T+1}, 1, v{vg}
    v_and_b32 v{T+2}, 1, v{vg}
    s_cmp_lt_u32 s{WV}, 2
    s_cbranch_scc1 L_nostore
    s_mul_i32 s60, s73, 28
    v_xor_b32 v{T}, s60, v{vq}
    v_lshlrev_b32 v{T+3}, 3, v{T+1}
    v_xor_b32 v{T}, v{T}, v{T+3}
    v_lshl_add_u32 v{T}, v{T+1}, 5, v{T}
    v_lshlrev_b32 v{T}, 4, v{T}
    v_lshl_add_u32 v{T}, v{T+2}, 3, v{T}
    s_add_u32 s60, s{sBOFF}, {XI}
    """)
    srd_off(A, 40, PWS, 60, 1152000)
    A(f"s_add_u32 s60, s{sBOFF}, {XT}")
    srd_off(A, 44, PWS, 60, 1152000)
    A(f"""
    s_mul_i32 s60, s{sTB}, 9216
    s_add_u32 s61, s60, 4096
    s_add_u32 s62, s60, 8192
    v_cmp_eq_u32 vcc, 3, v{vg}
    v_and_b32 v{T+3}, 0xffff, v{XA+17}
    v_or_b32 v{T+3}, 0x3f800000, v{T+3}
    v_mov_b32 v{T+4}, v{XA+16}
    v_cndmask_b32 v{T+5}, v{XA+17}, v{T+3}, vcc
    """)
    for p in range(8):
        A(f"buffer_store_dwordx2 v[{XA+2*p}:{XA+2*p+1}], v{T}, s[40:43], s{60 + p//4} offen offset:{(p%4)*1024} sc1")
    A(f"buffer_store_dwordx2 v[{T+4}:{T+5}], v{T}, s[40:43], s62 offen sc1")
    for p in range(9):
        A(f"buffer_store_dwordx2 v[{XA+2*p}:{XA+2*p+1}], v6, s[44:47], 0 offen offset:{32*p} sc1")
    A("L_nostore:")
    srd(A, 48, PDBG, 256)
    A(f"""
    v_lshrrev_b32 v{T+6}, 2, v{vq}
    v_xor_b32 v{T+6}, v{T+6}, v{T+1}
    v_lshlrev_b32 v{T+6}, 4, v{T+6}
    v_lshl_add_u32 v{T+6}, v{vq}, 6, v{T+6}
    v_lshl_add_u32 v{T+6}, v{T+2}, 3, v{T+6}
    v_add_u32 v{vk0}, {WK_L}, v{T+6}
    v_xor_b32 v{vk1}, 32, v{vk0}
    v_add_u32 v7, {WQ_L}, v{vtr}
    ; poll address / expected counts : lanes 0..7
    s_lshl_b32 s77, s{sB}, 7
    v_and_b32 v4, 7, v{lane}
    v_cmp_eq_u32 vcc, 7, v4
    v_lshlrev_b32 v4, 4, v4
    v_mov_b32 v5, 16
    v_cndmask_b32 v5, v5, 13, vcc
    s_waitcnt vmcnt(0) lgkmcnt(0)
    s_barrier
    s_cmp_lg_u32 s{WV}, 2
    s_cbranch_scc1 L_noflag
    s_cmp_ge_u32 s{sTB}, 125
    s_cbranch_scc1 L_noflag
    s_lshr_b32 s60, s{sTB}, 4
    s_lshl_b32 s60, s60, 4
    s_add_u32 s60, s60, s77
    v_mov_b32 v{T}, 1
    v_mov_b32 v{T+1}, 0
    s_mov_b64 exec, 1
    buffer_atomic_add v{T}, v{T+1}, s[48:51], s60 offen sc1
    s_mov_b64 exec, -1
    L_noflag:
    """.replace("v_cndmask_b32 v5, v5, 13, vcc", "v_mov_b32 v3, 13\n    v_cndmask_b32 v5, v5, v3, vcc"))
    stamp(A, stamps, 2)
    gemm(A, trread(7), XA, ACC, FB)
    A(f"buffer_load_dword v3, v4, s[48:51], s77 offen sc1")
    for t in range(9):
        A(f"v_cvt_pk_bf16_f32 v{B2+2*t}, v{ACC+4*t}, v{ACC+4*t+1}")
        A(f"v_cvt_pk_bf16_f32 v{B2+2*t+1}, v{ACC+4*t+2}, v{ACC+4*t+3}")
    def wkread(t, p, reg):
        return f"ds_read_b64 v[{reg}:{reg+1}], v{vk0 if p % 2 == 0 else vk1} offset:{(t*5 + p//2)*1024}"
    def early(t):
        if t != 3: return []
        o = ["s_waitcnt vmcnt(0)", "v_cmp_lt_u32 vcc, v3, v5", "s_mov_b32 s78, 0", "s_nop 3", "s_cbranch_vccnz L_early_no"]
        for j in range(9): o += dma(0, j)
        o += ["s_mov_b32 s78, 1", "L_early_no:"]
        return [("BLOCK", o)]
    class A2:
        def __init__(s, a): s.a = a
        def __call__(s, x):
            if isinstance(x, tuple):
                for y in x[1]: s.a(y)
            else: s.a(x)
    gemm(A2(A), wkread, B2, ACC2, FB, between=early)
    n_, c_ = T, T+1
    A(f"v_mul_f32 v{n_}, v{ACC2}, v{ACC2}")
    for i in range(1, 36):
        A(f"v_fmac_f32 v{n_}, v{ACC2+i}, v{ACC2+i}")
    reduce4(A, [n_], T+4)
    A(f"""
    v_mov_b32 v{c_}, v{ACC2+35}
    v_mov_b32 v{T+4}, v{ACC2+35}
    v_sqrt_f32 v{n_}, v{n_}
    v_permlane32_swap_b32 v{T+4}, v{c_}
    v_mov_b32 v{T+4}, v{c_}
    v_mov_b32 v{T+5}, {hex(f2u(60.0))}
    s_mov_b32 s60, {hex(f2u(-13.0 * SCL))}
    v_permlane16_swap_b32 v{T+4}, v{c_}
    v_fma_f32 v{n_}, v{n_}, s60, v{T+5}
    s_mov_b32 s60, {hex(f2u(SCL))}
    v_mul_f32 v{c_}, {hex(f2u(-SCL))}, v{c_}
    """)
    for i in range(36):
        A(f"v_fma_f32 v{ACC2+i}, v{ACC2+i}, s60, v{c_}")
    A(f"v_cmp_eq_u32 vcc, 3, v{vg}")
    A(f"v_cndmask_b32 v{ACC2+35}, v{ACC2+35}, v{n_}, vcc")
    A(f"""
    s_lshl_b32 s60, s73, 4
    v_add_u32 v{T+2}, s60, v{vq}
    v_and_b32 v{T+3}, 1, v{vg}
    v_lshrrev_b32 v{T+4}, 1, v{vg}
    v_lshl_add_u32 v{T+5}, v{T+3}, 5, v{T+2}
    v_lshlrev_b32 v{T+5}, 4, v{T+5}
    v_lshl_add_u32 v{T+5}, v{T+4}, 10, v{T+5}
    v_lshl_add_u32 v{T+6}, v{T+4}, 5, v{T+2}
    v_lshlrev_b32 v{T+6}, 4, v{T+6}
    v_lshl_add_u32 v{T+6}, v{T+3}, 3, v{T+6}
    s_lshr_b32 s60, s{WV}, 1
    s_mul_i32 s60, s60, 9216
    s_add_u32 s60, s60, {QX_L}
    v_add_u32 v{T+5}, s60, v{T+5}
    v_add_u32 v{T+6}, s60, v{T+6}
    """)
    for m in range(4):
        for i in range(4):
            A(f"v_cvt_pk_bf16_f32 v{B2+4*m+i}, v{ACC2+8*m+2*i}, v{ACC2+8*m+2*i+1}")
        A(f"ds_write_b128 v{T+5}, v[{B2+4*m}:{B2+4*m+3}] offset:{m*2048}")
    for i in range(2):
        A(f"v_cvt_pk_bf16_f32 v{B2+16+i}, v{ACC2+32+2*i}, v{ACC2+33+2*i}")
    A(f"ds_write_b64 v{T+6}, v[{B2+16}:{B2+17}] offset:8192")
    A(f"""
    v_add_u32 v{T}, {QX_L}, v{vL16}
    s_cmp_eq_u32 s78, 1
    s_cbranch_scc1 L_have0
    s_mov_b32 s79, 0
    L_poll0:
    buffer_load_dword v3, v4, s[48:51], s77 offen sc1
    s_add_u32 s79, s79, 1
    s_waitcnt vmcnt(0)
    v_cmp_lt_u32 vcc, v3, v5
    s_cmp_ge_u32 s79, 0x40000
    s_cbranch_scc1 L_poll0x
    s_cbranch_vccnz L_poll0
    L_poll0x:
    """)
    for j in range(9):
        for x in dma(0, j): A(x)
    A("L_have0:")
    A("s_add_u32 s12, s12, 9216")
    A("s_waitcnt lgkmcnt(0)")
    A("s_barrier")
    stamp(A, stamps, 3)
    for q in range(2):
        for st in range(9):
            if q*9 + st == 14: A("s_waitcnt lgkmcnt(8)")
            A(f"ds_read_b128 {ar(Q+36*q+4*st,4)}, v{T} offset:{q*9216 + st*1024}")
    for tl in range(1, 3):
        for j in range(9):
            for x in dma(tl, j): A(x)
        A("s_add_u32 s12, s12, 9216")
    srd(A, 56, PWUP, 82944)
    for sl in range(3):
        A(f"""
        s_add_u32 s60, s{WV}, {4*sl}
        s_cmp_ge_u32 s60, 5
        s_cselect_b32 s61, {288 - 5*18432}, 0
        s_mul_i32 s{68+sl}, s60, 18432
        s_add_u32 s{68+sl}, s{68+sl}, s61
        """)
    A(f"""
    s_cmp_ge_u32 s{WV}, 2
    s_cselect_b32 s70, 0x7fff0000, s70
    s_waitcnt vmcnt(18) lgkmcnt(0)
    s_barrier
    """)
    for st in range(9): A(kread(0, st))
    A("s_mov_b32 s14, 0")
    A("s_waitcnt lgkmcnt(0)")
    stamp(A, stamps, 4)
    body(A, 0, "f")
    body(A, 1, "s")
    A(".p2align 6")
    A("L_loop:")
    body(A, 2); body(A, 3); body(A, 0)
    body(A, 1, loopctl=["s_add_u32 s14, s14, 1", "s_cmp_ge_u32 s14, 2"])
    A("s_cbranch_scc0 L_loop")
    A("v_mov_b32 v192, 8")
    A("buffer_load_dword v193, v192, s[48:51], 0 offen sc1")
    body(A, 2, vm=18)
    A(f"""
    s_waitcnt vmcnt(9)
    v_cmp_gt_u32 vcc, 4, v193
    s_mov_b32 s79, 0
    s_nop 3
    s_cbranch_vccz L_wok
    L_pollw:
    buffer_load_dword v193, v192, s[48:51], 0 offen sc1
    s_add_u32 s79, s79, 1
    s_waitcnt vmcnt(0)
    v_cmp_gt_u32 vcc, 4, v193
    s_cmp_ge_u32 s79, 0x40000
    s_cbranch_scc1 L_wok
    s_cbranch_vccnz L_pollw
    L_wok:
    s_mul_i32 s60, s{WV}, 9216
    v_add_u32 v192, 4096, v{vL8}
    """)
    wl = []
    for mat in range(2):
        for i in range(3):
            if i < 2: wl.append(f"s_add_u32 s61, s60, {WF + mat*41472 + i*4608}")
            else: wl.append(f"s_mov_b32 s61, {WF + mat*41472 + 8*4608}")
            b = WA + (mat*3 + i)*18
            for ks in range(4):
                wl.append(f"buffer_load_dwordx4 {ar(b+4*ks,4)}, v{vL16}, s[52:55], s61 offen offset:{ks*1024} sc1")
            wl.append(f"buffer_load_dwordx2 {ar(b+16,2)}, v192, s[52:55], s61 offen sc1")
    body(A, 3, extra=wl[:18], vm=18 + 15)
    body(A, 0, extra=wl[18:], vm=18 + 30)
    def wdl(slot): return [x for j in range(9) for x in dma_wup(slot, j)]
    body(A, 1, dl=wdl(0), vm=18 + 15)
    body(A, 2, dl=wdl(1), vm=18)
    XR = 240; vxo, vx8, vc1 = 229, 230, 231
    A(f"s_add_u32 s60, s{sBOFF}, {XT}")
    srd_off(A, 44, PWS, 60, 1152000)
    srd_off(A, 40, PX, sBOFF, 1152000)
    A(f"""
    s_lshl_b32 s60, s{sTB}, 5
    v_add_u32 v{vxo}, s60, v{vq}
    v_mul_u32_u24 v{vxo}, 288, v{vxo}
    s_mul_i32 s61, s{WV}, 14
    s_sub_u32 s61, s61, 1
    s_cmp_eq_u32 s{WV}, 3
    s_cselect_b32 s61, 0, s61
    s_movk_i32 s63, 4608
    s_cselect_b32 s63, s63, 0x7fff0000
    s_mul_i32 s62, s61, 288
    v_lshl_add_u32 v{vc1}, v{vg}, 3, v{vxo}
    s_mul_i32 s60, s73, 4608
    s_add_u32 s60, s60, 256
    v_add_u32 v{vx8}, s60, v{vc1}
    v_add_u32 v{vc1}, s62, v{vc1}
    v_lshl_add_u32 v{vxo}, v{vg}, 4, v{vxo}
    s_lshl_b32 s60, s{WV}, 6
    v_add_u32 v{vxo}, s60, v{vxo}
    s_mov_b32 s62, 4608
    """)
    ex = xloads(44, vc1, 0, True, "0", " sc1") + xloads(44, vc1, 18, True, "s63", " sc1")
    ex += [f"buffer_load_dwordx4 {vr(XR,4)}, v{vxo}, s[40:43], 0 offen",
           f"buffer_load_dwordx4 {vr(XR+4,4)}, v{vxo}, s[40:43], s62 offen",
           f"buffer_load_dwordx2 {vr(XR+8,2)}, v{vx8}, s[40:43], 0 offen"]
    tailB = body(A, 3, dl=wdl(2), vm=None, extra=ex, last=True)
    stamp(A, stamps, 5)
    for x in tailB: A(x)
    ID = 232; TT = 192
    A(f"""
    v_lshlrev_b32 v{TT}, 2, v{vg}
    v_sub_u32 v{TT}, v{vq}, v{TT}
    v_mov_b32 v{TT+1}, 0x3f80
    v_mov_b32 v{TT+2}, 0x3f800000
    v_cmp_eq_u32 vcc, 0, v{TT}
    v_cndmask_b32 v{ID}, 0, v{TT+1}, vcc
    v_cmp_eq_u32 vcc, 1, v{TT}
    v_cndmask_b32 v{ID}, v{ID}, v{TT+2}, vcc
    v_cmp_eq_u32 vcc, 2, v{TT}
    v_cndmask_b32 v{ID+1}, 0, v{TT+1}, vcc
    v_cmp_eq_u32 vcc, 3, v{TT}
    v_cndmask_b32 v{ID+1}, v{ID+1}, v{TT+2}, vcc
    s_cmp_eq_u32 s{WV}, 1
    s_cbranch_scc1 L_e1
    s_cmp_eq_u32 s{WV}, 2
    s_cbranch_scc1 L_e2
    s_cmp_eq_u32 s{WV}, 3
    s_cbranch_scc1 L_e3
    """)
    third = [SP + 1792, SP + 1792 + 4608, FREE1, FREE2]
    def obx(src, i):
        if i < 2: return (3*SSTR + src*SLOT + i*4096, 3*SSTR + src*SLOT + 8192 + i*512)
        return (third[src] + 512, third[src])
    PK = SA; RB = SA
    R = 100 if False else None
    RR = 0
    for w in range(4):
        A(f"L_e{w}:")
        others = [wd for wd in range(4) if wd != w]
        A(f"v_add_u32 v{TT}, {FREE1}, v{vL16}")
        A(f"v_add_u32 v{TT+1}, {FREE1}, v{vL8}")
        pvs = [pv(1, qs, t) for t in range(9) for qs in range(2)]
        def pack(sub, wd, tmp):
            o = []
            for h in range(2):
                r = Oreg(sub, 2*wd + h)
                o.append(f"v_cvt_pk_bf16_f32 v{tmp+2*h}, v{r}, v{r+1}")
                o.append(f"v_cvt_pk_bf16_f32 v{tmp+2*h+1}, v{r+2}, v{r+3}")
            i = (wd - w - 1) % 4
            o.append(f"ds_write_b128 v{TT}, {vr(tmp,4)} offset:{obx(w, i)[0] + sub*1024 - FREE1}")
            return o
        def pack8(wd, tmp):
            r = Oreg(wd, 8); i = (wd - w - 1) % 4
            return [f"v_cvt_pk_bf16_f32 v{tmp}, v{r}, v{r+1}", f"v_cvt_pk_bf16_f32 v{tmp+1}, v{r+2}, v{r+3}",
                    f"ds_write_b64 v{TT+1}, {vr(tmp,2)} offset:{obx(w, i)[1] - FREE1}"]
        early_ = []; k = 0
        for sub in range(2):
            for wd in others:
                early_ += pack(sub, wd, PK + 4*(k % 4)); k += 1
        for wd in others:
            if wd < 2: early_ += pack8(wd, PK + 4*(k % 4)); k += 1
        if w >= 2:
            A("s_waitcnt vmcnt(21)")
        ke = 0
        for i, m in enumerate(pvs):
            A(m)
            n = (len(early_) * (i + 1)) // 18
            for x in early_[ke:n]: A(x)
            ke = n
        for sub in range(2, 4):
            for wd in others:
                for x in pack(sub, wd, PK + 4*(k % 4)): A(x)
                k += 1
        for wd in others:
            if wd >= 2:
                for x in pack8(wd, PK + 4*(k % 4)): A(x)
                k += 1
        A("s_waitcnt lgkmcnt(0) vmcnt(21)")
        A("s_barrier")
        R8 = TT + 2
        for sub in range(4):
            for n_, ws_ in enumerate(others):
                A(f"ds_read_b128 {vr(RB + (sub*3+n_)*4, 4)}, v{TT} offset:{obx(ws_, (w - ws_ - 1) % 4)[0] + sub*1024 - FREE1}")
        for n_, ws_ in enumerate(others):
            A(f"ds_read_b64 {vr(R8+2*n_,2)}, v{TT+1} offset:{obx(ws_, (w - ws_ - 1) % 4)[1] - FREE1}")
        for sub in range(4):
            for n_ in range(3):
                A(f"s_waitcnt lgkmcnt({14 - (sub*3+n_)})")
                for h in range(2):
                    o = vr(Oreg(sub, 2*w+h), 4)
                    d = o if n_ < 2 else ar(KF + 8*sub + 4*h, 4)
                    if n_ < 2:
                        A(f"v_mfma_f32_16x16x16_bf16 {o}, {vr(ID,2)}, {vr(RB+(sub*3+n_)*4+2*h,2)}, {o}")
                    else:
                        A(f"v_mfma_f32_16x16x16_bf16 {o}, {vr(ID,2)}, {vr(RB+(sub*3+n_)*4+2*h,2)}, {o}")
        A("s_waitcnt lgkmcnt(0)")
        for n_ in range(3):
            o = vr(Oreg(w, 8), 4)
            A(f"v_mfma_f32_16x16x16_bf16 {o}, {vr(ID,2)}, {vr(R8+2*n_,2)}, {o}")
        SB = TT + 2
        RK = 144
        for sub in range(2):
            for h in range(2):
                r = Oreg(sub, 2*w+h)
                A(f"v_cvt_pk_bf16_f32 v{SB+4*sub+2*h}, v{r}, v{r+1}")
                A(f"v_cvt_pk_bf16_f32 v{SB+4*sub+2*h+1}, v{r+2}, v{r+3}")
        r = Oreg(w, 8)
        for sg in range(2):
            for h in range(2):
                for j in range(4): A(f"v_mov_b32 v{RK+8*sg+4*h+j}, v{Oreg(2+sg, 2*w+h)+j}")
        A(f"v_cvt_pk_bf16_f32 v{SB+8}, v{r}, v{r+1}")
        A(f"v_cvt_pk_bf16_f32 v{SB+9}, v{r+2}, v{r+3}")
        for j in range(4): A(f"v_mov_b32 v{RK+16+j}, v{r+j}")
        if w < 3: A("s_branch L_common")
    A("L_common:")
    SB = TT + 2; RK = 144
    A(f"""
    s_xor_b32 s60, s2, 1
    s_mul_i32 s60, s60, 10240
    s_add_u32 s60, s60, {XCH}
    s_lshl_b32 s61, s73, 9
    s_add_u32 s61, s61, s60
    s_add_u32 s61, s61, 8192
    s_cmp_ge_u32 s{WV}, 2
    s_cselect_b32 s61, 0x7fff0000, s61
    s_lshl_b32 s62, s{WV}, 11
    s_add_u32 s60, s60, s62
    """)
    for j in range(10): A(f"v_min_u32 v{SB+j}, -2, v{SB+j}")
    A(f"buffer_store_dwordx4 {vr(SB,4)}, v{vL16}, s[52:55], s60 offen sc1")
    A(f"buffer_store_dwordx4 {vr(SB+4,4)}, v{vL16}, s[52:55], s60 offen offset:1024 sc1")
    A(f"buffer_store_dwordx2 {vr(SB+8,2)}, v{vL8}, s[52:55], s61 offen sc1")
    stamp(A, stamps, 6)
    cT = 0; cFB = 12; cACC = 68; cDW = 0
    k0 = -2 * math.sqrt(2 / math.pi) * math.log2(math.e); k1_ = k0 * 0.044715
    A(f"s_mov_b32 s60, {hex(f2u(k1_))}")
    A(f"v_mov_b32 v{cT+8}, {hex(f2u(k0))}")
    A(f"v_add_u32 v{cT+9}, {SSTR}, v{vtr}")
    A(f"s_waitcnt vmcnt(3)")
    def gelu(acc, t):
        o = []
        r = [acc + 4*t + i for i in range(4)]
        for i in range(4): o.append(f"v_mul_f32 v{cT+i}, v{r[i]}, v{r[i]}")
        for i in range(4): o.append(f"v_fma_f32 v{cT+i}, v{cT+i}, s60, v{cT+8}")
        for i in range(4): o.append(f"v_mul_f32 v{cT+i}, v{cT+i}, v{r[i]}")
        for i in range(4): o.append(f"v_exp_f32 v{cT+i}, v{cT+i}")
        for i in range(4): o.append(f"v_add_f32 v{cT+i}, 1.0, v{cT+i}")
        for i in range(4): o.append(f"v_rcp_f32 v{cT+i}, v{cT+i}")
        for i in range(4): o.append(f"v_mul_f32 v{r[i]}, v{r[i]}, v{cT+i}")
        return o
    def upread(half):
        def rd(t, p, reg):
            pc = half*5 + p//2
            base = (pc // 4)*SSTR + (pc % 4)*SLOT + (p % 2)*4608 + t*32
            if half == 0: return f"ds_read_b64_tr_b16 v[{reg}:{reg+1}], v{vtr} offset:{base}"
            return f"ds_read_b64_tr_b16 v[{reg}:{reg+1}], v{cT+9} offset:{base - SSTR}"
        return rd
    def gemm_ag(read, Bag, nb, acc, between):
        def reads(t):
            base = cFB + 18 * (t % 3)
            return [read(t, p, base + 2*p) for p in [8, 0, 1, 2, 3, 4, 5, 6, 7]]
        for x in reads(0): A(x)
        A("s_waitcnt lgkmcnt(6)")
        for x in reads(1): A(x)
        for t in range(9):
            A("s_waitcnt lgkmcnt(9)" if t < 8 else "s_waitcnt lgkmcnt(0)")
            base = cFB + 18 * (t % 3)
            extra = between(t); k = 0
            for i, s_ in enumerate([4, 0, 1, 2, 3]):
                n = 4 if s_ < 4 else 2
                op = "v_mfma_f32_16x16x32_bf16" if s_ < 4 else "v_mfma_f32_16x16x16_bf16"
                for b in range(nb):
                    a_ = vr(acc + 36*b + 4*t, 4)
                    A(f"{op} {a_}, {vr(base+4*s_, n)}, {ar(Bag+18*b+4*s_, n)}, {'0' if i == 0 else a_}")
                if i == 0 and t + 2 < 9:
                    rr = reads(t+2)
                    for x in rr[:6]: A(x)
                    pend = rr[6:]
                elif i == 1 and t + 2 < 9:
                    A("s_waitcnt lgkmcnt(12)")
                    for x in pend: A(x)
                m = (len(extra) * (i + 1)) // 5
                for x in extra[k:m]: A(x)
                k = m
    A(f"s_cmp_lg_u32 s{WV}, 3")
    A(f"s_cbranch_scc1 L_convG")
    UB = [FREE1 + 4608, FREE2 + 4608]
    gemm_ag(upread(0), 0, 2, cACC, lambda t: (gelu(cACC, t-1) + gelu(cACC+36, t-1)) if t >= 1 else [])
    for x in gelu(cACC, 8) + gelu(cACC+36, 8): A(x)
    for b in range(2):
        for t in range(9):
            r = cACC + 36*b + 4*t
            pk = cFB + 18*b + 2*t
            A(f"v_cvt_pk_bf16_f32 v{pk}, v{r}, v{r+1}")
            A(f"v_cvt_pk_bf16_f32 v{pk+1}, v{r+2}, v{r+3}")
            if t % 2 == 1: A(f"ds_write_b128 v{TT}, {vr(pk-2,4)} offset:{UB[b] + (t//2)*1024 - FREE1}")
            if t == 8: A(f"ds_write_b64 v{TT+1}, {vr(pk,2)} offset:{UB[b] + 4096 - FREE1}")
    A("s_waitcnt lgkmcnt(0)")
    A("s_barrier")
    A("s_branch L_recv")
    A("L_convG:")
    gemm_ag(upread(1), 0, 1, cACC, lambda t: gelu(cACC, t-2) if t >= 2 else [])
    for x in gelu(cACC, 7) + gelu(cACC, 8): A(x)
    pool = list(range(12, 68, 4)) + list(range(104, 144, 4)) + list(range(164, 176, 4))
    DWr = lambda t, i: pool[t*3 + i]
    A(f"v_lshlrev_b32 v{cT+10}, 4, v{vg}")
    A(f"v_add_u32 v{cT+10}, {DW_L}, v{cT+10}")
    s_, q_, m_, r_ = cT, cT+1, cT+2, cT+3
    rd = [f"ds_read_b128 {vr(DWr(t,i),4)}, v{cT+10} offset:{i*576 + t*64}" for t in range(9) for i in range(3)]
    for x in rd[:15]: A(x)
    A(f"v_mov_b32 v{s_}, v{cACC}")
    A(f"v_mul_f32 v{q_}, v{cACC}, v{cACC}")
    for i in range(1, 36):
        A(f"v_add_f32 v{s_}, v{s_}, v{cACC+i}")
        A(f"v_fmac_f32 v{q_}, v{cACC+i}, v{cACC+i}")
    A("s_waitcnt lgkmcnt(0)")
    for x in rd[15:]: A(x)
    reduce4(A, [s_, q_], cT+4)
    stats(A, s_, q_, m_, r_)
    for i in range(36):
        A(f"v_fma_f32 v{cACC+i}, v{cACC+i}, v{r_}, v{m_}")
    A("s_waitcnt lgkmcnt(0)")
    for t in range(9):
        c = DWr(t, 1)
        for j in range(4): A(f"v_mul_f32 v{c+j}, v{c+j}, v{cACC+4*t+j}")
        for j in range(4): A(f"v_fmac_f32_dpp v{c+j}, v{cACC+4*t+j}, v{DWr(t,0)+j} row_shr:1 row_mask:0xf bank_mask:0xf bound_ctrl:0")
        for j in range(4): A(f"v_fmac_f32_dpp v{c+j}, v{cACC+4*t+j}, v{DWr(t,2)+j} row_shl:1 row_mask:0xf bank_mask:0xf bound_ctrl:0")
    A(f"""
    s_mul_i32 s61, s{WV}, 14
    s_sub_u32 s61, s61, 1
    v_add_u32 v{cT}, s61, v{vq}
    v_add_u32 v{cT+1}, -1, v{vq}
    v_cmp_gt_u32 vcc, 14, v{cT+1}
    v_cmp_gt_u32 s[62:63], 32, v{cT}
    s_and_b64 vcc, vcc, s[62:63]
    v_bfe_u32 v{cT+1}, v{cT}, 4, 1
    v_and_b32 v{cT}, 15, v{cT}
    v_lshl_add_u32 v{cT}, v{vg}, 4, v{cT}
    v_mul_u32_u24 v{cT+2}, 9216, v{cT+1}
    v_mul_u32_u24 v{cT+3}, 4608, v{cT+1}
    v_lshl_add_u32 v{cT+4}, v{cT}, 4, v{cT+2}
    v_lshl_add_u32 v{cT+5}, v{cT}, 3, v{cT+2}
    v_add_u32 v{cT+4}, {UB[0]}, v{cT+4}
    v_add_u32 v{cT+5}, {UB[0] + 4096}, v{cT+5}
    v_lshl_add_u32 v{cT+6}, v{cT}, 4, v{cT+3}
    v_lshl_add_u32 v{cT+7}, v{cT}, 3, v{cT+3}
    v_add_u32 v{cT+6}, {CM + 9216}, v{cT+6}
    v_add_u32 v{cT+7}, {CM + 9216 + 4096}, v{cT+7}
    v_add_u32 v{cT+8}, {DUMMY}, v{vL16}
    v_cndmask_b32 v{cT+6}, v{cT+8}, v{cT+6}, vcc
    v_cndmask_b32 v{cT+7}, v{cT+8}, v{cT+7}, vcc
    s_barrier
    """)
    UR = cACC
    for ks in range(4): A(f"ds_read_b128 {vr(UR+4*ks,4)}, v{cT+4} offset:{ks*1024}")
    A(f"ds_read_b64 {vr(UR+16,2)}, v{cT+5}")
    ZP = cACC + 18
    for t in range(9):
        if t % 2 == 0: A("s_waitcnt lgkmcnt(4)")
        c = DWr(t, 1)
        for j in range(2):
            A(f"v_lshlrev_b32 v{cT+8}, 16, v{UR+2*t+j}")
            A(f"v_and_b32 v{cT+9}, 0xffff0000, v{UR+2*t+j}")
            A(f"v_mul_f32 v{c+2*j}, v{c+2*j}, v{cT+8}")
            A(f"v_mul_f32 v{c+2*j+1}, v{c+2*j+1}, v{cT+9}")
        A(f"v_cvt_pk_bf16_f32 v{ZP+2*t}, v{c}, v{c+1}")
        A(f"v_cvt_pk_bf16_f32 v{ZP+2*t+1}, v{c+2}, v{c+3}")
        if t % 2 == 1: A(f"ds_write_b128 v{cT+6}, {vr(ZP+2*t-2,4)} offset:{(t//2)*1024}")
        if t == 8: A(f"ds_write_b64 v{cT+7}, {vr(ZP+16,2)}")
    A("L_recv:")
    stamp(A, stamps, 7)
    IB = SB
    A(f"""
    s_lshl_b32 s60, s{WV}, 11
    s_add_u32 s60, s60, s76
    s_lshl_b32 s61, s73, 9
    s_add_u32 s61, s61, s76
    s_add_u32 s61, s61, 8192
    s_cmp_lt_u32 s{WV}, 2
    s_cselect_b32 s61, 0x7fff0000, s61
    s_mov_b32 s79, 0
    L_pollx:
    buffer_load_dwordx4 {vr(IB,4)}, v{vL16}, s[52:55], s60 offen sc1
    buffer_load_dwordx4 {vr(IB+4,4)}, v{vL16}, s[52:55], s60 offen offset:1024 sc1
    buffer_load_dwordx2 {vr(IB+8,2)}, v{vL8}, s[52:55], s61 offen sc1
    s_add_u32 s79, s79, 1
    s_waitcnt vmcnt(0)
    v_max3_u32 v204, v{IB}, v{IB+1}, v{IB+2}
    v_max3_u32 v205, v{IB+3}, v{IB+4}, v{IB+5}
    v_max3_u32 v204, v204, v{IB+6}, v{IB+7}
    v_max3_u32 v205, v205, v{IB+8}, v{IB+9}
    v_max_u32 v204, v204, v205
    v_cmp_eq_u32 vcc, -1, v204
    s_cmp_ge_u32 s79, 0x40000
    s_cbranch_scc1 L_gotx
    s_cbranch_vccnz L_pollx
    L_gotx:
    """)
    for i in range(5):
        o = vr(RK + 4*i, 4)
        A(f"v_mfma_f32_16x16x16_bf16 {o}, {vr(ID,2)}, {vr(IB+2*i,2)}, {o}")
    A(f"""
    s_lshl_b32 s60, s{WV}, 10
    s_add_u32 s60, s60, {CM}
    v_add_u32 v204, s60, v{vL16}
    s_mul_i32 s60, s73, 4608
    s_add_u32 s60, s60, {CM + 4096}
    s_cmp_lt_u32 s{WV}, 2
    s_cselect_b32 s60, {DUMMY + 1024}, s60
    v_add_u32 v205, s60, v{vL8}
    v_add_u32 v206, {CM}, v{vL16}
    v_add_u32 v207, {CM + 4096}, v{vL8}
    """)
    PK = 164
    for i in range(10):
        A(f"v_cvt_pk_bf16_f32 v{PK+i}, v{RK+2*i}, v{RK+2*i+1}")
        if i == 3: A(f"ds_write_b128 v204, {vr(PK,4)}")
        if i == 7: A(f"ds_write_b128 v204, {vr(PK+4,4)} offset:4608")
    A(f"ds_write_b64 v205, {vr(PK+8,2)}")
    A("s_waitcnt lgkmcnt(0)")
    A("s_barrier")
    FBR = 0
    AZ = 80; AT = 100
    order = []
    for m_ in (2, 3): order.append((m_, 4))
    for ks in range(4):
        for m_ in (2, 3): order.append((m_, ks))
    for m_ in (0, 1): order.append((m_, 4))
    for ks in range(4):
        for m_ in (0, 1): order.append((m_, ks))
    def rdf(m_, ks):
        if ks == 4: return f"ds_read_b64 {vr(FBR+20*m_+16,2)}, v207 offset:{m_*4608}"
        return f"ds_read_b128 {vr(FBR+20*m_+4*ks,4)}, v206 offset:{m_*4608 + ks*1024}"
    for x in order[:14]: A(rdf(*x))
    jobs = [(0, 0), (1, 0), (0, 1), (1, 1), (2, 0), (2, 1)]
    def fg(acc, mat, s_):
        n = 4 if s_ < 4 else 2
        op = "v_mfma_f32_16x16x32_bf16" if s_ < 4 else "v_mfma_f32_16x16x16_bf16"
        for jn, (i, sg) in enumerate(jobs):
            a_ = vr(acc + 4*jn, 4)
            A(f"{op} {a_}, {ar(WA+(mat*3+i)*18+4*s_, n)}, {vr(FBR+20*(2*mat+sg)+4*s_, n)}, {'0' if s_ == 4 else a_}")
    AZ = 80; AT = 104
    A("s_waitcnt lgkmcnt(12)")
    fg(AZ, 1, 4)
    A("s_waitcnt lgkmcnt(8)")
    for x in order[14:]: A(rdf(*x))
    fg(AZ, 1, 0); fg(AZ, 1, 1)
    A("s_waitcnt lgkmcnt(8)")
    L = 128
    for sg in range(2): A(f"v_and_b32 v{L+sg}, 0xffff0000, v{FBR+20*sg+17}")
    fg(AT, 0, 4)
    for sg in range(2): A(f"v_mov_b32 v{L+2+sg}, v{L+sg}")
    fg(AZ, 1, 2)
    for sg in range(2): A(f"v_permlane32_swap_b32 v{L+2+sg}, v{L+sg}")
    fg(AZ, 1, 3)
    for sg in range(2): A(f"v_mov_b32 v{L+2+sg}, v{L+sg}")
    A("s_waitcnt lgkmcnt(0)")
    fg(AT, 0, 0)
    for sg in range(2): A(f"v_permlane16_swap_b32 v{L+2+sg}, v{L+sg}")
    fg(AT, 0, 1)
    for sg in range(2): A(f"v_rcp_f32 v{L+sg}, v{L+sg}")
    fg(AT, 0, 2)
    fg(AT, 0, 3)
    srd_off(A, 40, POUT, sBOFF, 1152000)
    U = 132
    for jn, (i, sg) in enumerate(jobs[:4]):
        xb = XR + 4*sg + 2*i
        for j in range(2):
            A(f"v_lshlrev_b32 v{U}, 16, v{xb+j}")
            A(f"v_and_b32 v{U+1}, 0xffff0000, v{xb+j}")
            A(f"v_add_f32 v{AZ+4*jn+2*j}, v{AZ+4*jn+2*j}, v{U}")
            A(f"v_add_f32 v{AZ+4*jn+2*j+1}, v{AZ+4*jn+2*j+1}, v{U+1}")
    A(f"s_cmp_eq_u32 s73, 1")
    A(f"s_cselect_b64 vcc, -1, 0")
    A(f"s_mov_b32 s62, 4608")
    A(f"s_cmp_ge_u32 s{WV}, 2")
    A(f"s_cselect_b32 s63, 0x7fff0000, 0")
    for jn, (i, sg) in enumerate(jobs):
        for j in range(4):
            A(f"v_fma_f32 v{AZ+4*jn+j}, v{AT+4*jn+j}, v{L+sg}, v{AZ+4*jn+j}")
        if i < 2:
            dst = PK + 4*sg + 2*i
            A(f"v_cvt_pk_bf16_f32 v{dst}, v{AZ+4*jn}, v{AZ+4*jn+1}")
            A(f"v_cvt_pk_bf16_f32 v{dst+1}, v{AZ+4*jn+2}, v{AZ+4*jn+3}")
            if i == 1:
                A(f"buffer_store_dwordx4 {vr(PK+4*sg,4)}, v{vxo}, s[40:43], {'0' if sg == 0 else 's62'} offen")
    for j in range(4): A(f"v_cndmask_b32 v{AZ+16+j}, v{AZ+16+j}, v{AZ+20+j}, vcc")
    for j in range(2):
        A(f"v_lshlrev_b32 v{U}, 16, v{XR+8+j}")
        A(f"v_and_b32 v{U+1}, 0xffff0000, v{XR+8+j}")
        A(f"v_add_f32 v{AZ+16+2*j}, v{AZ+16+2*j}, v{U}")
        A(f"v_add_f32 v{AZ+17+2*j}, v{AZ+17+2*j}, v{U+1}")
    A(f"v_cvt_pk_bf16_f32 v{PK+8}, v{AZ+16}, v{AZ+17}")
    A(f"v_cvt_pk_bf16_f32 v{PK+9}, v{AZ+18}, v{AZ+19}")
    A(f"buffer_store_dwordx2 {vr(PK+8,2)}, v{vx8}, s[40:43], s63 offen")
    if stamps:
        A(f"""
        s_waitcnt vmcnt(0)
        s_memrealtime s[96:97]
        s_lshl_b32 s4, s2, 2
        s_add_u32 s4, s4, s{WV}
        s_mul_i32 s5, s4, 80
        s_add_u32 s5, s5, {STAMP}
        s_waitcnt lgkmcnt(0)
        v_mov_b32 v4, s5
        """)
        for i in range(9):
            A(f"v_mov_b32 v0, s{80+2*i}")
            A(f"v_mov_b32 v1, s{81+2*i}")
            A(f"global_store_dwordx2 v4, v[0:1], s[{PWS}:{PWS+1}] offset:{8*i}")
    A("s_endpgm")

    A("L_roleW:")
    A(f"""
    s_lshl_b32 s4, s{sHALF}, 2
    s_add_u32 s4, s4, s{WV}                   ; d tile
    s_mul_i32 s8, s{sB}, 41472
    s_cmp_eq_u32 s{sB}, 0
    s_cselect_b32 s10, s{PWV}, s{PWDN}
    s_cselect_b32 s11, s{PWV+1}, s{PWDN+1}
    """)
    srd(A, 40, 10, 41472); srd(A, 44, PWAO, 41472); srd_off(A, 48, PWM, 8, 41472); srd(A, 52, PWS, WS_USED); srd(A, 56, PDBG, 256)
    linear_dma(44, 0)
    linear_dma(48, 41984)
    A(f"""
    v_lshlrev_b32 v7, 3, v{vg}
    v_add_u32 v7, {143*288}, v7
    """)
    for x in xloads(40, 7, X): A(x)
    vp, vn = T+8, T+9
    A(f"""
    v_add_u32 v{vn}, 41984, v{vtr}
    v_and_b32 v{T}, 3, v{lane}
    v_lshl_add_u32 v{vp}, v{T}, 3, v{vn}
    s_waitcnt vmcnt(0)
    s_barrier
    L_wtile:
    s_lshl_b32 s5, s4, 4
    v_add_u32 v6, s5, v{vq}
    v_mul_u32_u24 v6, 288, v6
    v_lshl_add_u32 v6, v{vg}, 3, v6
    """)
    for x in xloads(40, 6, B2): A(x)
    A(f"""
    s_waitcnt vmcnt(0)
    s_cmp_lg_u32 s{sB}, 0
    s_cbranch_scc1 L_w2
    """)
    for i in range(18):
        A(f"v_lshlrev_b32 v{T}, 16, v{B2+i}")
        A(f"v_and_b32 v{T+1}, 0xffff0000, v{B2+i}")
        A(f"v_lshlrev_b32 v{T+2}, 16, v{X+i}")
        A(f"v_and_b32 v{T+3}, 0xffff0000, v{X+i}")
        A(f"v_sub_f32 v{T}, v{T}, v{T+2}")
        A(f"v_sub_f32 v{T+1}, v{T+1}, v{T+3}")
        A(f"v_cvt_pk_bf16_f32 v{XA+i}, v{T}, v{T+1}")
    gemm(A, trread(vtr), XA, ACC, FB)
    for t in range(9):
        A(f"v_cvt_pk_bf16_f32 v{B2+2*t}, v{ACC+4*t}, v{ACC+4*t+1}")
        A(f"v_cvt_pk_bf16_f32 v{B2+2*t+1}, v{ACC+4*t+2}, v{ACC+4*t+3}")
    A("L_w2:")
    def wmread(t, p, reg):
        if t < 8:
            return f"ds_read_b64_tr_b16 v[{reg}:{reg+1}], v{vp} offset:{p*4608 + (t//2)*64 + (t%2)*8}"
        return f"ds_read_b64_tr_b16 v[{reg}:{reg+1}], v{vn} offset:{p*4608 + 256}"
    gemm(A, wmread, B2, ACC2, FB, swap=True)
    A(f"""
    s_lshr_b32 s5, s4, 1
    s_lshl_b32 s5, s5, 10
    s_and_b32 s60, s4, 1
    s_lshl_b32 s60, s60, 3
    s_add_u32 s5, s5, s60
    s_add_u32 s5, s5, s8
    s_add_u32 s5, s5, {WF}
    s_cmp_eq_u32 s4, 8
    s_cselect_b32 s60, 3, 4
    v_lshlrev_b32 v{T}, s60, v{lane}
    """)
    for t in range(9):
        A(f"v_cvt_pk_bf16_f32 v{XA+2*t}, v{ACC2+4*t}, v{ACC2+4*t+1}")
        A(f"v_cvt_pk_bf16_f32 v{XA+2*t+1}, v{ACC2+4*t+2}, v{ACC2+4*t+3}")
        A(f"s_add_u32 s60, s5, {t*4608}")
        A(f"buffer_store_dwordx2 v[{XA+2*t}:{XA+2*t+1}], v{T}, s[52:55], s60 offen sc1")
    A(f"""
    s_add_u32 s4, s4, 8
    s_cmp_lt_u32 s4, 9
    s_cbranch_scc1 L_wtile
    s_waitcnt vmcnt(0)
    s_barrier
    s_cmp_lg_u32 s{WV}, 0
    s_cbranch_scc1 L_end
    v_mov_b32 v{T}, 1
    v_mov_b32 v{T+1}, 8
    s_mov_b64 exec, 1
    buffer_atomic_add v{T}, v{T+1}, s[56:59], 0 offen sc1
    L_end:
    s_endpgm
    """)
    return A
```

```python
import sys
sys.path.insert(0, "gen")
from asmlib import *
import hazard, k3
HDR = open("standalone__conformer_family_branchformer__speech.s.ref").read().split("; Override launch")[0]
KN = "standalone__conformer_family_branchformer__speech_kernel"
def finish(A, tag):
    lines, probs = hazard.fix(A.lines, auto=True, timed=False)
    n = sum(1 for a in lines if a.strip().startswith("s_nop")) - sum(1 for a in A.lines if a.strip().startswith("s_nop"))
    print(f"{tag}: {len(lines)} lines, {n} nops inserted", file=sys.stderr)
    return "\n".join(lines) + "\n"
def build(path, **kw):
    txt = HDR + f"; @launch grid=({k3.NWG},1,1) block=(256,1,1) lds={k3.LDS}\n" + HEADER
    txt += kernel_begin(KN) + finish(k3.gen(KN, **kw), "k3")
    txt += '.section .rodata,"a"\n.p2align 6\n' + kernel_desc(KN, 512, 100, 256)
    open(path, "w").write(txt)
if __name__ == "__main__":
    build("f1.s")
    build("f1dbg.s", stamps=True)
    build("f1pf.s", pf=True)
```

```python
import sys, math
from asmlib import *
from k1 import f2u, srd, srd_off, reduce4, stats, gemm, SCL
from k2 import place

XI = 0x000000
XT = 0x240000
WF = 0x480000
XCH = 0x4A0000
WS_USED = XCH + 256 * 10240
STAMP = 0x8000000
NWG = 256
SLOT = 9216; SSTR = 36864
SP = 147456
LDS = 163840
WQ_L, WK_L, QX_L = 36864, 78848, 124928
DW_L = SP
FREE1, FREE2 = 2*SSTR + 2*SLOT, 2*SSTR + 3*SLOT
CM = 3*SSTR
DUMMY = SP + 11264

lane, vg, vq, vL16, vL8, vtr = 208, 209, 210, 211, 212, 213
aK, aV0, aV1 = (214, 215), (216, 217), (218, 219)
WUO = 220
O = 0; SA = 144; PA = 176
Q = 0; KF = 72; VF = 108; WA = 144
PX, PWQ, PWK, PWV, PWAO, PWUP, PDW, PWDN, PWM, POUT, PDBG, PWS = 16, 18, 20, 22, 24, 26, 28, 30, 32, 34, 36, 38
WV = 3
sQB, sHALF, sB, sW8 = 4, 5, 6, 7
sLB, sBOFF, sTA, sTB = 64, 65, 66, 67
def Oreg(sub, t): return O + (sub*9 + t)*4
def vr(b, n): return f"v[{b}:{b+n-1}]"
def ar(b, n): return f"a[{b}:{b+n-1}]"
SC = " sc1"

def dma(slot, j):
    out = []
    grp = j // 4
    if j % 4 == 0:
        out.append(f"s_add_u32 m0, s{sLB}, {slot*SSTR + grp*4096}")
        out.append(f"s_add_u32 s13, s12, {grp*4096}")
    out.append(f"buffer_load_dwordx4 v{vL16}, s[8:11], s13 offen offset:{(j%4)*1024}{SC} lds")
    return out
def dma_wup(slot, j):
    return [f"s_add_u32 m0, s{sLB}, {slot*SSTR + j*1024}",
            f"buffer_load_dwordx4 v{WUO+j}, s[56:59], s{68+slot} offen lds"]
def kread(slot, st):
    return f"ds_read_b128 {ar(KF+4*st, 4)}, v{aK[slot//2]} offset:{(slot%2)*SSTR + st*1024}"
def vread(slot, t, u):
    return f"ds_read_b64_tr_b16 {ar(VF+4*t+2*u, 2)}, v{(aV0 if u == 0 else aV1)[slot//2]} offset:{(slot%2)*SSTR + t*1024}"
def qk(q, st):
    S = SA + 16*q
    c = "0" if st == 0 else vr(S, 16)
    return f"v_mfma_f32_32x32x16_bf16 {vr(S,16)}, {ar(KF+4*st,4)}, {ar(Q+36*q+4*st,4)}, {c}"
def pv(q, qs, t, first=False):
    o = Oreg(q*2+qs, t)
    c = "0" if first else vr(o, 4)
    return f"v_mfma_f32_16x16x32_bf16 {vr(o,4)}, {ar(VF+4*t,4)}, {vr(PA+8*q+4*qs,4)}, {c}"
def sm(q):
    S = SA + 16*q; P = PA + 8*q
    ops = []
    order = [0, 4, 1, 5, 2, 6, 3, 7]
    for n, j in enumerate(order):
        ops.append(f"v_exp_f32 v{S+2*j}, v{S+2*j}")
        ops.append(f"v_exp_f32 v{S+2*j+1}, v{S+2*j+1}")
        if n >= 1:
            jj = order[n-1]
            ops.append(f"v_cvt_pk_bf16_f32 v{P+jj}, v{S+2*jj}, v{S+2*jj+1}")
        if n >= 4 and n % 2 == 0:
            i = (n - 4) // 2
            ops.append(f"v_permlane16_swap_b32 v{P+i}, v{P+i+4}")
    ops.append(f"v_cvt_pk_bf16_f32 v{P+7}, v{S+14}, v{S+15}")
    ops.append(f"v_permlane16_swap_b32 v{P+2}, v{P+6}")
    ops.append(f"v_permlane16_swap_b32 v{P+3}, v{P+7}")
    return ops

def body(A, sl, kind="n", vm=18, dl=None, extra=(), loopctl=(), last=False):
    first = kind == "f"
    qkA = [qk(0, st) for st in range(9)]; qkB = [qk(1, st) for st in range(9)]
    pvB = [pv(1, qs, t, kind == "s") for t in range(9) for qs in range(2)]
    pvA = [pv(0, qs, t, first) for t in range(9) for qs in range(2)]
    M = qkA + pvB + qkB + pvA
    P1 = list(range(0, 9)); P2 = list(range(9, 27)); P3 = list(range(27, 36)); P4 = list(range(36, 54))
    is32 = [True]*9 + [False]*18 + [True]*9 + [False]*18
    big = 1 if extra else 0
    vcap = [4 if x else 2 for x in is32]; vcnt = [4 if x else 1 for x in is32]; mcap = [2 + big if x else 1 + big for x in is32]
    streams = []
    streams.append(([f"s_waitcnt lgkmcnt(0) vmcnt({vm})" if vm is not None else "s_waitcnt lgkmcnt(0)"], [P3[-1]], None))
    if not last:
        streams.append((["s_waitcnt lgkmcnt(0)"], [P4[-1]], None))
    if loopctl:
        streams.append((list(loopctl), [P4[-3], P4[-2]], [0, 1]))
    vcap[P4[-1]] = 0; vcnt[P4[-1]] = 0
    streams.append((sm(0), P2[5:] + P3[:-1], None))
    streams.append((sm(1), P4[5:] + P1[:-1], None))
    vl = [vread(sl, t, u) for t in range(9) for u in range(2)]
    streams.append((vl, P2[1:] + P3[:-2], [2*t for t in range(9) for u in range(2)]))
    if not last:
        streams.append(([kread((sl+1) % 4, st) for st in range(9)], P4[:-5], None))
    if dl is None:
        dl = []
        for j in range(9): dl += dma((sl + 3) % 4, j)
        dl.append("s_add_u32 s12, s12, 9216")
    streams.append((list(dl), P1 + P2 + P3[:-1], None))
    if extra:
        streams.append((list(extra), P4[:-1] if last else P1 + P2 + P3[:-1], None))
    FM, FV = place(vcap, vcnt, mcap, streams)
    tailB = [x for g in P1 for x in FV[g]]
    if first:
        for g in P1:
            A(M[g]);  [A(x) for x in FM[g]]
        mem = [x for g in P2 + P3[:-1] for x in FM[g]]
        val = sm(0)
        km = 0; kv = 0
        for i, g in enumerate(P3):
            A(M[g])
            m = (len(mem) * (i + 1)) // 8 if i < 8 else len(mem)
            for x in mem[km:m]: A(x)
            km = max(km, m)
            if i >= 2:
                n = min(len(val), kv + 3)
                for x in val[kv:n]: A(x)
                kv = n
        for x in val[kv:]: A(x)
        for x in FM[P3[-1]]: A(x)
        for g in P4:
            A(M[g]); [A(x) for x in FM[g] + FV[g]]
    else:
        for g in range(len(M)):
            A(M[g]); [A(x) for x in FM[g] + FV[g]]
    return tailB

def layernorm_x(A, X, XA, T):
    import k1
    k1.layernorm_x(A, X, XA, T)

def stamp(A, on, n):
    if on: A(f"s_memrealtime s[{80+2*n}:{81+2*n}]")

def gen(name, stamps=False, pf=False, spin=None, spinwg=None):
    A = Asm()
    T = 8; X = 20; XA = 40; FB = 58; ACC = 112; B2 = 148; ACC2 = 168
    if spin is not None:
        stamps = True
        A("s_memrealtime s[98:99]")
    A(f"""
    s_cmp_ge_u32 s2, {NWG}
    s_cbranch_scc1 L_end
    s_load_dwordx16 s[16:31], s[0:1], 0
    s_load_dwordx8 s[32:39], s[0:1], 64
    v_lshrrev_b32 v{T}, 6, v0
    v_and_b32 v{lane}, 63, v0
    v_readfirstlane_b32 s{WV}, v{T}
    v_lshrrev_b32 v{vg}, 4, v{lane}
    v_and_b32 v{vq}, 15, v{lane}
    v_lshlrev_b32 v{vL16}, 4, v{lane}
    v_lshlrev_b32 v{vL8}, 3, v{lane}
    v_lshrrev_b32 v{T}, 2, v{lane}
    v_mul_u32_u24 v{T}, 288, v{T}
    v_and_b32 v{T+1}, 3, v{lane}
    v_lshl_add_u32 v{vtr}, v{T+1}, 3, v{T}
    s_lshr_b32 s{sQB}, s2, 3
    s_lshl_b32 s{sQB}, s{sQB}, 1
    s_bfe_u32 s5, s2, 0x10001
    s_add_u32 s{sQB}, s{sQB}, s5
    s_and_b32 s{sHALF}, s2, 1
    s_bfe_u32 s{sB}, s2, 0x10002
    s_mul_i32 s{sBOFF}, s{sB}, 1152000
    s_mul_i32 s{sLB}, s{WV}, {SLOT}
    s_lshl_b32 s{sTA}, s{sQB}, 1
    s_add_u32 s{sTB}, s{sTA}, s{sHALF}
    s_xor_b32 s{sTA}, s{sTB}, 1
    s_cmp_ge_u32 s{WV}, 2
    s_cselect_b32 s72, s{sTB}, s{sTA}
    s_and_b32 s73, s{WV}, 1                    ; parity
    s_lshl_b32 s74, s72, 1
    s_add_u32 s74, s74, s73
    s_lshl_b32 s75, s74, 4
    v_add_u32 v6, s75, v{vq}
    v_mul_u32_u24 v6, 288, v6
    v_lshl_add_u32 v6, v{vg}, 3, v6
    s_cmp_ge_u32 s{sQB}, 63
    s_waitcnt lgkmcnt(0)
    s_cbranch_scc1 L_roleW
    """)
    stamp(A, stamps, 0)
    def xloads(srdn, voff, dst, ag=False, so="0", sc=""):
        o = []
        for p in range(9):
            d = (ar if ag else vr)(dst + 2*p, 2)
            o.append(f"buffer_load_dwordx2 {d}, v{voff}, s[{srdn}:{srdn+3}], {so} offen offset:{32*p}{sc}")
        return o
    def linear_dma(srdn, ldsbase):
        A(f"s_lshl_b32 s61, s{WV}, 10")
        for k in range(10):
            A(f"s_add_u32 m0, s61, {ldsbase + k*4096}")
            A(f"s_add_u32 s62, s61, {k*4096}")
            A(f"buffer_load_dwordx4 v{vL16}, s[{srdn}:{srdn+3}], s62 offen lds")
        A(f"s_mov_b32 m0, {ldsbase + 40960}")
        A(f"s_mov_b32 s62, 40960")
        A(f"buffer_load_dwordx4 v{vL16}, s[{srdn}:{srdn+3}], s62 offen lds")
    def trread(vaddr, base=0):
        def rd(t, p, reg):
            return f"ds_read_b64_tr_b16 v[{reg}:{reg+1}], v{vaddr} offset:{base + p*4608 + t*32}"
        return rd
    srd_off(A, 40, PX, sBOFF, 1152000)
    for x in xloads(40, 6, X): A(x)
    if pf:
        A(f"""
        s_getpc_b64 s[60:61]
        L_pc:
        s_lshr_b32 s62, s2, 3
        s_lshl_b32 s62, s62, 2
        s_add_u32 s62, s62, s{WV}
        s_mul_i32 s63, s62, 205
        s_lshr_b32 s63, s63, 10
        s_mul_i32 s63, s63, 5
        s_sub_u32 s62, s62, s63
        s_lshl_b32 s62, s62, 13
        v_lshlrev_b32 v5, 7, v{lane}
        v_add_u32 v5, s62, v5
        v_min_u32 v5, 40000, v5
        global_load_dword v5, v5, s[60:61]
        """)
    srd(A, 44, PWQ, 41472); srd(A, 48, PWK, 41472); srd(A, 52, PWS, WS_USED); srd(A, 56, PDW, 864)
    A(f"v_lshlrev_b32 v{T+2}, 2, v0")
    A(f"buffer_load_dword v7, v{T+2}, s[56:59], 0 offen")
    linear_dma(44, WQ_L)
    va1, va2 = T+8, T+9
    A(f"""
    v_lshrrev_b32 v{T}, 2, v{lane}
    v_and_b32 v{T+1}, 3, v{lane}
    v_xor_b32 v{T+1}, v{T+1}, v{vg}
    v_lshlrev_b32 v{T+1}, 4, v{T+1}
    v_mul_u32_u24 v{va2}, 288, v{T}
    v_add_u32 v{va2}, v{va2}, v{T+1}
    v_and_b32 v{T+2}, 3, v{T}
    v_lshl_add_u32 v{T+2}, v{vg}, 3, v{T+2}
    v_mul_u32_u24 v{va1}, 288, v{T+2}
    v_add_u32 v{va1}, v{va1}, v{T+1}
    s_mul_i32 s60, s{WV}, {32*288}
    s_mul_i32 s61, s{WV}, 10240
    """)
    for par in range(2):
        for s_ in range(5):
            A(f"s_add_u32 m0, s61, {WK_L + (par*5 + s_)*1024}")
            A(f"s_add_u32 s62, s60, {par*4*288 + 64*s_}")
            A(f"buffer_load_dwordx4 v{va1}, s[48:51], s62 offen lds")
    A(f"""
    s_lshl_b32 s61, s{WV}, 10
    s_add_u32 m0, s61, {WK_L + 40*1024}
    s_lshl_b32 s62, s{WV}, 6
    s_add_u32 s62, s62, {128*288}
    buffer_load_dwordx4 v{va2}, s[48:51], s62 offen lds
    s_mov_b32 m0, {WK_L + 44*1024}
    s_mov_b32 s62, {128*288 + 256}
    buffer_load_dwordx4 v{va2}, s[48:51], s62 offen lds
    """)
    ndma = 11 + 12
    A(f"""
    v_mov_b32 v{T+4}, -1
    v_mov_b32 v{T+5}, -1
    v_mov_b32 v{T+6}, -1
    v_mov_b32 v{T+7}, -1
    s_mul_i32 s76, s2, 10240
    s_add_u32 s76, s76, {XCH}
    s_lshl_b32 s60, s{WV}, 11
    s_add_u32 s60, s60, s76
    s_lshl_b32 s61, s73, 9
    s_add_u32 s61, s61, s76
    s_add_u32 s61, s61, 8192
    buffer_store_dwordx4 v[{T+4}:{T+7}], v{vL16}, s[52:55], s60 offen sc1
    buffer_store_dwordx4 v[{T+4}:{T+7}], v{vL16}, s[52:55], s60 offen offset:1024 sc1
    buffer_store_dwordx2 v[{T+4}:{T+5}], v{vL8}, s[52:55], s61 offen sc1
    """)
    t1, t2, t3, t4 = T, T+1, T+2, T+3
    A(f"""
    v_and_b32 v{t1}, 31, v{lane}
    v_lshrrev_b32 v{t2}, 5, v{lane}
    v_bfe_u32 v{t3}, v{lane}, 4, 1
    v_mul_u32_u24 v{t3}, 12, v{t3}
    v_xor_b32 v{t1}, v{t1}, v{t3}
    v_lshlrev_b32 v{t3}, 3, v{t2}
    v_xor_b32 v{t1}, v{t1}, v{t3}
    v_lshl_add_u32 v{t1}, v{t2}, 5, v{t1}
    v_lshlrev_b32 v{aK[0]}, 4, v{t1}
    v_add_u32 v{aK[0]}, s{sLB}, v{aK[0]}
    v_add_u32 v{aK[1]}, {2*SSTR}, v{aK[0]}
    v_bfe_u32 v{t1}, v{lane}, 4, 1
    v_bfe_u32 v{t3}, v{lane}, 2, 2
    v_lshl_add_u32 v{t3}, v{t1}, 4, v{t3}
    v_lshl_add_u32 v{t3}, v{t2}, 2, v{t3}
    v_mul_u32_u24 v{t1}, 12, v{t1}
    v_xor_b32 v{t3}, v{t3}, v{t1}
    v_bfe_u32 v{t1}, v{lane}, 1, 1
    v_lshlrev_b32 v{t4}, 3, v{t1}
    v_xor_b32 v{t3}, v{t3}, v{t4}
    v_lshl_add_u32 v{t3}, v{t1}, 5, v{t3}
    v_lshlrev_b32 v{t3}, 4, v{t3}
    v_and_b32 v{t4}, 1, v{lane}
    v_lshl_add_u32 v{t3}, v{t4}, 3, v{t3}
    v_add_u32 v{aV0[0]}, s{sLB}, v{t3}
    v_xor_b32 v{aV1[0]}, 128, v{aV0[0]}
    v_add_u32 v{aV0[1]}, {2*SSTR}, v{aV0[0]}
    v_add_u32 v{aV1[1]}, {2*SSTR}, v{aV1[0]}
    s_movk_i32 s60, 3641
    """)
    for j in range(9):
        A(f"v_add_u32 v{t1}, {64*j}, v{lane}")
        A(f"v_mul_u32_u24 v{t2}, s60, v{t1}")
        A(f"v_lshrrev_b32 v{t2}, 16, v{t2}")
        A(f"v_mul_u32_u24 v{t2}, 288, v{t2}")
        A(f"v_lshl_add_u32 v{WUO+j}, v{t1}, 4, v{t2}")
    A(f"""
    s_lshl_b32 s{sW8}, s{sHALF}, 2
    s_add_u32 s{sW8}, s{sW8}, s{WV}
    s_lshl_b32 s60, s{sW8}, 4
    s_sub_i32 s61, s{sW8}, 5
    s_max_i32 s61, s61, 0
    s_sub_u32 s60, s60, s61
    s_mul_i32 s60, s60, 9216
    s_add_u32 s60, s60, s{sBOFF}
    s_add_u32 s60, s60, {XI}
    s_add_u32 s8, s{PWS}, s60
    s_addc_u32 s9, s{PWS+1}, 0
    s_cmp_ge_u32 s{sW8}, 5
    s_cselect_b32 s10, 15, 16
    s_mul_i32 s10, s10, 9216
    s_mov_b32 s11, 0x20000
    s_mov_b32 s12, 0
    s_waitcnt vmcnt({ndma + 3})
    v_lshlrev_b32 v{T+4}, 16, v7
    v_and_b32 v{T+5}, 0xffff0000, v7
    v_lshlrev_b32 v{T+2}, 3, v0
    v_add_u32 v{T+2}, {DW_L}, v{T+2}
    v_cmp_gt_u32 vcc, 216, v0
    s_and_saveexec_b64 s[60:61], vcc
    ds_write_b64 v{T+2}, v[{T+4}:{T+5}]
    s_mov_b64 exec, s[60:61]
    """)
    stamp(A, stamps, 1)
    layernorm_x(A, X, XA, T)
    vk0, vk1 = T+10, T+11
    A(f"""
    v_lshrrev_b32 v{T+1}, 1, v{vg}
    v_and_b32 v{T+2}, 1, v{vg}
    s_cmp_lt_u32 s{WV}, 2
    s_cbranch_scc1 L_nostore
    s_mul_i32 s60, s73, 28
    v_xor_b32 v{T}, s60, v{vq}
    v_lshlrev_b32 v{T+3}, 3, v{T+1}
    v_xor_b32 v{T}, v{T}, v{T+3}
    v_lshl_add_u32 v{T}, v{T+1}, 5, v{T}
    v_lshlrev_b32 v{T}, 4, v{T}
    v_lshl_add_u32 v{T}, v{T+2}, 3, v{T}
    s_add_u32 s60, s{sBOFF}, {XI}
    """)
    srd_off(A, 40, PWS, 60, 1152000)
    A(f"s_add_u32 s60, s{sBOFF}, {XT}")
    srd_off(A, 44, PWS, 60, 1152000)
    A(f"""
    s_mul_i32 s60, s{sTB}, 9216
    s_add_u32 s61, s60, 4096
    s_add_u32 s62, s60, 8192
    v_cmp_eq_u32 vcc, 3, v{vg}
    v_and_b32 v{T+3}, 0xffff, v{XA+17}
    v_or_b32 v{T+3}, 0x3f800000, v{T+3}
    v_mov_b32 v{T+4}, v{XA+16}
    v_cndmask_b32 v{T+5}, v{XA+17}, v{T+3}, vcc
    """)
    for p in range(8):
        A(f"buffer_store_dwordx2 v[{XA+2*p}:{XA+2*p+1}], v{T}, s[40:43], s{60 + p//4} offen offset:{(p%4)*1024} sc1")
    A(f"buffer_store_dwordx2 v[{T+4}:{T+5}], v{T}, s[40:43], s62 offen sc1")
    for p in range(9):
        A(f"buffer_store_dwordx2 v[{XA+2*p}:{XA+2*p+1}], v6, s[44:47], 0 offen offset:{32*p} sc1")
    A("L_nostore:")
    srd(A, 48, PDBG, 256)
    A(f"""
    v_lshrrev_b32 v{T+6}, 2, v{vq}
    v_xor_b32 v{T+6}, v{T+6}, v{T+1}
    v_lshlrev_b32 v{T+6}, 4, v{T+6}
    v_lshl_add_u32 v{T+6}, v{vq}, 6, v{T+6}
    v_lshl_add_u32 v{T+6}, v{T+2}, 3, v{T+6}
    v_add_u32 v{vk0}, {WK_L}, v{T+6}
    v_xor_b32 v{vk1}, 32, v{vk0}
    v_add_u32 v7, {WQ_L}, v{vtr}
    ; poll address / expected counts : lanes 0..7
    s_lshl_b32 s77, s{sB}, 7
    v_and_b32 v4, 7, v{lane}
    v_cmp_eq_u32 vcc, 7, v4
    v_lshlrev_b32 v4, 4, v4
    v_mov_b32 v5, 16
    v_cndmask_b32 v5, v5, 13, vcc
    s_waitcnt vmcnt(0) lgkmcnt(0)
    s_barrier
    s_cmp_lg_u32 s{WV}, 2
    s_cbranch_scc1 L_noflag
    s_cmp_ge_u32 s{sTB}, 125
    s_cbranch_scc1 L_noflag
    s_lshr_b32 s60, s{sTB}, 4
    s_lshl_b32 s60, s60, 4
    s_add_u32 s60, s60, s77
    v_mov_b32 v{T}, 1
    v_mov_b32 v{T+1}, 0
    s_mov_b64 exec, 1
    buffer_atomic_add v{T}, v{T+1}, s[48:51], s60 offen sc1
    s_mov_b64 exec, -1
    L_noflag:
    """.replace("v_cndmask_b32 v5, v5, 13, vcc", "v_mov_b32 v3, 13\n    v_cndmask_b32 v5, v5, v3, vcc"))
    stamp(A, stamps, 2)
    gemm(A, trread(7), XA, ACC, FB)
    A(f"buffer_load_dword v3, v4, s[48:51], s77 offen sc1")
    for t in range(9):
        A(f"v_cvt_pk_bf16_f32 v{B2+2*t}, v{ACC+4*t}, v{ACC+4*t+1}")
        A(f"v_cvt_pk_bf16_f32 v{B2+2*t+1}, v{ACC+4*t+2}, v{ACC+4*t+3}")
    def wkread(t, p, reg):
        return f"ds_read_b64 v[{reg}:{reg+1}], v{vk0 if p % 2 == 0 else vk1} offset:{(t*5 + p//2)*1024}"
    def early(t):
        if t != 3: return []
        o = ["s_waitcnt vmcnt(0)", "v_cmp_lt_u32 vcc, v3, v5", "s_mov_b32 s78, 0", "s_nop 3", "s_cbranch_vccnz L_early_no"]
        for j in range(9): o += dma(0, j)
        o += ["s_mov_b32 s78, 1", "L_early_no:"]
        return [("BLOCK", o)]
    class A2:
        def __init__(s, a): s.a = a
        def __call__(s, x):
            if isinstance(x, tuple):
                for y in x[1]: s.a(y)
            else: s.a(x)
    gemm(A2(A), wkread, B2, ACC2, FB, between=early)
    n_, c_ = T, T+1
    A(f"v_mul_f32 v{n_}, v{ACC2}, v{ACC2}")
    for i in range(1, 36):
        A(f"v_fmac_f32 v{n_}, v{ACC2+i}, v{ACC2+i}")
    reduce4(A, [n_], T+4)
    A(f"""
    v_mov_b32 v{c_}, v{ACC2+35}
    v_mov_b32 v{T+4}, v{ACC2+35}
    v_sqrt_f32 v{n_}, v{n_}
    v_permlane32_swap_b32 v{T+4}, v{c_}
    v_mov_b32 v{T+4}, v{c_}
    v_mov_b32 v{T+5}, {hex(f2u(60.0))}
    s_mov_b32 s60, {hex(f2u(-13.0 * SCL))}
    v_permlane16_swap_b32 v{T+4}, v{c_}
    v_fma_f32 v{n_}, v{n_}, s60, v{T+5}
    s_mov_b32 s60, {hex(f2u(SCL))}
    v_mul_f32 v{c_}, {hex(f2u(-SCL))}, v{c_}
    """)
    for i in range(36):
        A(f"v_fma_f32 v{ACC2+i}, v{ACC2+i}, s60, v{c_}")
    A(f"v_cmp_eq_u32 vcc, 3, v{vg}")
    A(f"v_cndmask_b32 v{ACC2+35}, v{ACC2+35}, v{n_}, vcc")
    A(f"""
    s_lshl_b32 s60, s73, 4
    v_add_u32 v{T+2}, s60, v{vq}
    v_and_b32 v{T+3}, 1, v{vg}
    v_lshrrev_b32 v{T+4}, 1, v{vg}
    v_lshl_add_u32 v{T+5}, v{T+3}, 5, v{T+2}
    v_lshlrev_b32 v{T+5}, 4, v{T+5}
    v_lshl_add_u32 v{T+5}, v{T+4}, 10, v{T+5}
    v_lshl_add_u32 v{T+6}, v{T+4}, 5, v{T+2}
    v_lshlrev_b32 v{T+6}, 4, v{T+6}
    v_lshl_add_u32 v{T+6}, v{T+3}, 3, v{T+6}
    s_lshr_b32 s60, s{WV}, 1
    s_mul_i32 s60, s60, 9216
    s_add_u32 s60, s60, {QX_L}
    v_add_u32 v{T+5}, s60, v{T+5}
    v_add_u32 v{T+6}, s60, v{T+6}
    """)
    for m in range(4):
        for i in range(4):
            A(f"v_cvt_pk_bf16_f32 v{B2+4*m+i}, v{ACC2+8*m+2*i}, v{ACC2+8*m+2*i+1}")
        A(f"ds_write_b128 v{T+5}, v[{B2+4*m}:{B2+4*m+3}] offset:{m*2048}")
    for i in range(2):
        A(f"v_cvt_pk_bf16_f32 v{B2+16+i}, v{ACC2+32+2*i}, v{ACC2+33+2*i}")
    A(f"ds_write_b64 v{T+6}, v[{B2+16}:{B2+17}] offset:8192")
    A(f"""
    v_add_u32 v{T}, {QX_L}, v{vL16}
    s_cmp_eq_u32 s78, 1
    s_cbranch_scc1 L_have0
    s_mov_b32 s79, 0
    L_poll0:
    buffer_load_dword v3, v4, s[48:51], s77 offen sc1
    s_add_u32 s79, s79, 1
    s_waitcnt vmcnt(0)
    v_cmp_lt_u32 vcc, v3, v5
    s_cmp_ge_u32 s79, 0x40000
    s_cbranch_scc1 L_poll0x
    s_cbranch_vccnz L_poll0
    L_poll0x:
    """)
    for j in range(9):
        for x in dma(0, j): A(x)
    A("L_have0:")
    A("s_add_u32 s12, s12, 9216")
    A("s_waitcnt lgkmcnt(0)")
    A("s_barrier")
    stamp(A, stamps, 3)
    for q in range(2):
        for st in range(9):
            if q*9 + st == 14: A("s_waitcnt lgkmcnt(8)")
            A(f"ds_read_b128 {ar(Q+36*q+4*st,4)}, v{T} offset:{q*9216 + st*1024}")
    for tl in range(1, 3):
        for j in range(9):
            for x in dma(tl, j): A(x)
        A("s_add_u32 s12, s12, 9216")
    srd(A, 56, PWUP, 82944)
    for sl in range(3):
        A(f"""
        s_add_u32 s60, s{WV}, {4*sl}
        s_cmp_ge_u32 s60, 5
        s_cselect_b32 s61, {288 - 5*18432}, 0
        s_mul_i32 s{68+sl}, s60, 18432
        s_add_u32 s{68+sl}, s{68+sl}, s61
        """)
    A(f"""
    s_cmp_ge_u32 s{WV}, 2
    s_cselect_b32 s70, 0x7fff0000, s70
    s_waitcnt vmcnt(18) lgkmcnt(0)
    s_barrier
    """)
    for st in range(9): A(kread(0, st))
    A("s_mov_b32 s14, 0")
    A("s_waitcnt lgkmcnt(0)")
    stamp(A, stamps, 4)
    body(A, 0, "f")
    body(A, 1, "s")
    A(".p2align 6")
    A("L_loop:")
    body(A, 2); body(A, 3); body(A, 0)
    body(A, 1, loopctl=["s_add_u32 s14, s14, 1", "s_cmp_ge_u32 s14, 2"])
    A("s_cbranch_scc0 L_loop")
    A("v_mov_b32 v192, 8")
    A("buffer_load_dword v193, v192, s[48:51], 0 offen sc1")
    body(A, 2, vm=18)
    A(f"""
    s_waitcnt vmcnt(9)
    v_cmp_gt_u32 vcc, 4, v193
    s_mov_b32 s79, 0
    s_nop 3
    s_cbranch_vccz L_wok
    L_pollw:
    buffer_load_dword v193, v192, s[48:51], 0 offen sc1
    s_add_u32 s79, s79, 1
    s_waitcnt vmcnt(0)
    v_cmp_gt_u32 vcc, 4, v193
    s_cmp_ge_u32 s79, 0x40000
    s_cbranch_scc1 L_wok
    s_cbranch_vccnz L_pollw
    L_wok:
    s_mul_i32 s60, s{WV}, 9216
    v_add_u32 v192, 4096, v{vL8}
    """)
    wl = []
    for mat in range(2):
        for i in range(3):
            if i < 2: wl.append(f"s_add_u32 s61, s60, {WF + mat*41472 + i*4608}")
            else: wl.append(f"s_mov_b32 s61, {WF + mat*41472 + 8*4608}")
            b = WA + (mat*3 + i)*18
            for ks in range(4):
                wl.append(f"buffer_load_dwordx4 {ar(b+4*ks,4)}, v{vL16}, s[52:55], s61 offen offset:{ks*1024} sc1")
            wl.append(f"buffer_load_dwordx2 {ar(b+16,2)}, v192, s[52:55], s61 offen sc1")
    body(A, 3, extra=wl[:18], vm=18 + 15)
    body(A, 0, extra=wl[18:], vm=18 + 30)
    def wdl(slot): return [x for j in range(9) for x in dma_wup(slot, j)]
    body(A, 1, dl=wdl(0), vm=18 + 15)
    body(A, 2, dl=wdl(1), vm=18)
    XR = 240; vxo, vx8, vc1 = 229, 230, 231
    A(f"s_add_u32 s60, s{sBOFF}, {XT}")
    srd_off(A, 44, PWS, 60, 1152000)
    srd_off(A, 40, PX, sBOFF, 1152000)
    A(f"""
    s_lshl_b32 s60, s{sTB}, 5
    v_add_u32 v{vxo}, s60, v{vq}
    v_mul_u32_u24 v{vxo}, 288, v{vxo}
    s_mul_i32 s61, s{WV}, 14
    s_sub_u32 s61, s61, 1
    s_cmp_eq_u32 s{WV}, 3
    s_cselect_b32 s61, 0, s61
    s_movk_i32 s63, 4608
    s_cselect_b32 s63, s63, 0x7fff0000
    s_mul_i32 s62, s61, 288
    v_lshl_add_u32 v{vc1}, v{vg}, 3, v{vxo}
    s_mul_i32 s60, s73, 4608
    s_add_u32 s60, s60, 256
    v_add_u32 v{vx8}, s60, v{vc1}
    v_add_u32 v{vc1}, s62, v{vc1}
    v_lshl_add_u32 v{vxo}, v{vg}, 4, v{vxo}
    s_lshl_b32 s60, s{WV}, 6
    v_add_u32 v{vxo}, s60, v{vxo}
    s_mov_b32 s62, 4608
    """)
    ex = xloads(44, vc1, 0, True, "0", " sc1") + xloads(44, vc1, 18, True, "s63", " sc1")
    ex += [f"buffer_load_dwordx4 {vr(XR,4)}, v{vxo}, s[40:43], 0 offen",
           f"buffer_load_dwordx4 {vr(XR+4,4)}, v{vxo}, s[40:43], s62 offen",
           f"buffer_load_dwordx2 {vr(XR+8,2)}, v{vx8}, s[40:43], 0 offen"]
    tailB = body(A, 3, dl=wdl(2), vm=None, extra=ex, last=True)
    stamp(A, stamps, 5)
    for x in tailB: A(x)
    ID = 232; TT = 192
    A(f"""
    v_lshlrev_b32 v{TT}, 2, v{vg}
    v_sub_u32 v{TT}, v{vq}, v{TT}
    v_mov_b32 v{TT+1}, 0x3f80
    v_mov_b32 v{TT+2}, 0x3f800000
    v_cmp_eq_u32 vcc, 0, v{TT}
    v_cndmask_b32 v{ID}, 0, v{TT+1}, vcc
    v_cmp_eq_u32 vcc, 1, v{TT}
    v_cndmask_b32 v{ID}, v{ID}, v{TT+2}, vcc
    v_cmp_eq_u32 vcc, 2, v{TT}
    v_cndmask_b32 v{ID+1}, 0, v{TT+1}, vcc
    v_cmp_eq_u32 vcc, 3, v{TT}
    v_cndmask_b32 v{ID+1}, v{ID+1}, v{TT+2}, vcc
    s_cmp_eq_u32 s{WV}, 1
    s_cbranch_scc1 L_e1
    s_cmp_eq_u32 s{WV}, 2
    s_cbranch_scc1 L_e2
    s_cmp_eq_u32 s{WV}, 3
    s_cbranch_scc1 L_e3
    """)
    third = [SP + 1792, SP + 1792 + 4608, FREE1, FREE2]
    def obx(src, i):
        if i < 2: return (3*SSTR + src*SLOT + i*4096, 3*SSTR + src*SLOT + 8192 + i*512)
        return (third[src] + 512, third[src])
    PK = SA; RB = SA
    R = 100 if False else None
    RR = 0
    for w in range(4):
        A(f"L_e{w}:")
        others = [wd for wd in range(4) if wd != w]
        A(f"v_add_u32 v{TT}, {FREE1}, v{vL16}")
        A(f"v_add_u32 v{TT+1}, {FREE1}, v{vL8}")
        pvs = [pv(1, qs, t) for t in range(9) for qs in range(2)]
        def pack(sub, wd, tmp):
            o = []
            for h in range(2):
                r = Oreg(sub, 2*wd + h)
                o.append(f"v_cvt_pk_bf16_f32 v{tmp+2*h}, v{r}, v{r+1}")
                o.append(f"v_cvt_pk_bf16_f32 v{tmp+2*h+1}, v{r+2}, v{r+3}")
            i = (wd - w - 1) % 4
            o.append(f"ds_write_b128 v{TT}, {vr(tmp,4)} offset:{obx(w, i)[0] + sub*1024 - FREE1}")
            return o
        def pack8(wd, tmp):
            r = Oreg(wd, 8); i = (wd - w - 1) % 4
            return [f"v_cvt_pk_bf16_f32 v{tmp}, v{r}, v{r+1}", f"v_cvt_pk_bf16_f32 v{tmp+1}, v{r+2}, v{r+3}",
                    f"ds_write_b64 v{TT+1}, {vr(tmp,2)} offset:{obx(w, i)[1] - FREE1}"]
        early_ = []; k = 0
        for sub in range(2):
            for wd in others:
                early_ += pack(sub, wd, PK + 4*(k % 4)); k += 1
        for wd in others:
            if wd < 2: early_ += pack8(wd, PK + 4*(k % 4)); k += 1
        if w >= 2:
            A("s_waitcnt vmcnt(21)")
        ke = 0
        for i, m in enumerate(pvs):
            A(m)
            n = (len(early_) * (i + 1)) // 18
            for x in early_[ke:n]: A(x)
            ke = n
        for sub in range(2, 4):
            for wd in others:
                for x in pack(sub, wd, PK + 4*(k % 4)): A(x)
                k += 1
        for wd in others:
            if wd >= 2:
                for x in pack8(wd, PK + 4*(k % 4)): A(x)
                k += 1
        A("s_waitcnt lgkmcnt(0) vmcnt(21)")
        A("s_barrier")
        R8 = TT + 2
        for sub in range(4):
            for n_, ws_ in enumerate(others):
                A(f"ds_read_b128 {vr(RB + (sub*3+n_)*4, 4)}, v{TT} offset:{obx(ws_, (w - ws_ - 1) % 4)[0] + sub*1024 - FREE1}")
        for n_, ws_ in enumerate(others):
            A(f"ds_read_b64 {vr(R8+2*n_,2)}, v{TT+1} offset:{obx(ws_, (w - ws_ - 1) % 4)[1] - FREE1}")
        for sub in range(4):
            for n_ in range(3):
                A(f"s_waitcnt lgkmcnt({14 - (sub*3+n_)})")
                for h in range(2):
                    o = vr(Oreg(sub, 2*w+h), 4)
                    d = o if n_ < 2 else ar(KF + 8*sub + 4*h, 4)
                    if n_ < 2:
                        A(f"v_mfma_f32_16x16x16_bf16 {o}, {vr(ID,2)}, {vr(RB+(sub*3+n_)*4+2*h,2)}, {o}")
                    else:
                        A(f"v_mfma_f32_16x16x16_bf16 {o}, {vr(ID,2)}, {vr(RB+(sub*3+n_)*4+2*h,2)}, {o}")
        A("s_waitcnt lgkmcnt(0)")
        for n_ in range(3):
            o = vr(Oreg(w, 8), 4)
            A(f"v_mfma_f32_16x16x16_bf16 {o}, {vr(ID,2)}, {vr(R8+2*n_,2)}, {o}")
        SB = TT + 2
        RK = 144
        for sub in range(2):
            for h in range(2):
                r = Oreg(sub, 2*w+h)
                A(f"v_cvt_pk_bf16_f32 v{SB+4*sub+2*h}, v{r}, v{r+1}")
                A(f"v_cvt_pk_bf16_f32 v{SB+4*sub+2*h+1}, v{r+2}, v{r+3}")
        r = Oreg(w, 8)
        for sg in range(2):
            for h in range(2):
                for j in range(4): A(f"v_mov_b32 v{RK+8*sg+4*h+j}, v{Oreg(2+sg, 2*w+h)+j}")
        A(f"v_cvt_pk_bf16_f32 v{SB+8}, v{r}, v{r+1}")
        A(f"v_cvt_pk_bf16_f32 v{SB+9}, v{r+2}, v{r+3}")
        for j in range(4): A(f"v_mov_b32 v{RK+16+j}, v{r+j}")
        if w < 3: A("s_branch L_common")
    A("L_common:")
    SB = TT + 2; RK = 144
    A(f"""
    s_xor_b32 s60, s2, 1
    s_mul_i32 s60, s60, 10240
    s_add_u32 s60, s60, {XCH}
    s_lshl_b32 s61, s73, 9
    s_add_u32 s61, s61, s60
    s_add_u32 s61, s61, 8192
    s_cmp_ge_u32 s{WV}, 2
    s_cselect_b32 s61, 0x7fff0000, s61
    s_lshl_b32 s62, s{WV}, 11
    s_add_u32 s60, s60, s62
    """)
    for j in range(10): A(f"v_min_u32 v{SB+j}, -2, v{SB+j}")
    A(f"buffer_store_dwordx4 {vr(SB,4)}, v{vL16}, s[52:55], s60 offen sc1")
    A(f"buffer_store_dwordx4 {vr(SB+4,4)}, v{vL16}, s[52:55], s60 offen offset:1024 sc1")
    A(f"buffer_store_dwordx2 {vr(SB+8,2)}, v{vL8}, s[52:55], s61 offen sc1")
    stamp(A, stamps, 6)
    cT = 0; cFB = 12; cACC = 68; cDW = 0
    k0 = -2 * math.sqrt(2 / math.pi) * math.log2(math.e); k1_ = k0 * 0.044715
    A(f"s_mov_b32 s60, {hex(f2u(k1_))}")
    A(f"v_mov_b32 v{cT+8}, {hex(f2u(k0))}")
    A(f"v_add_u32 v{cT+9}, {SSTR}, v{vtr}")
    A(f"s_waitcnt vmcnt(3)")
    def gelu(acc, t):
        o = []
        r = [acc + 4*t + i for i in range(4)]
        for i in range(4): o.append(f"v_mul_f32 v{cT+i}, v{r[i]}, v{r[i]}")
        for i in range(4): o.append(f"v_fma_f32 v{cT+i}, v{cT+i}, s60, v{cT+8}")
        for i in range(4): o.append(f"v_mul_f32 v{cT+i}, v{cT+i}, v{r[i]}")
        for i in range(4): o.append(f"v_exp_f32 v{cT+i}, v{cT+i}")
        for i in range(4): o.append(f"v_add_f32 v{cT+i}, 1.0, v{cT+i}")
        for i in range(4): o.append(f"v_rcp_f32 v{cT+i}, v{cT+i}")
        for i in range(4): o.append(f"v_mul_f32 v{r[i]}, v{r[i]}, v{cT+i}")
        return o
    def upread(half):
        def rd(t, p, reg):
            pc = half*5 + p//2
            base = (pc // 4)*SSTR + (pc % 4)*SLOT + (p % 2)*4608 + t*32
            if half == 0: return f"ds_read_b64_tr_b16 v[{reg}:{reg+1}], v{vtr} offset:{base}"
            return f"ds_read_b64_tr_b16 v[{reg}:{reg+1}], v{cT+9} offset:{base - SSTR}"
        return rd
    def gemm_ag(read, Bag, nb, acc, between):
        def reads(t):
            base = cFB + 18 * (t % 3)
            return [read(t, p, base + 2*p) for p in [8, 0, 1, 2, 3, 4, 5, 6, 7]]
        for x in reads(0): A(x)
        A("s_waitcnt lgkmcnt(6)")
        for x in reads(1): A(x)
        for t in range(9):
            A("s_waitcnt lgkmcnt(9)" if t < 8 else "s_waitcnt lgkmcnt(0)")
            base = cFB + 18 * (t % 3)
            extra = between(t); k = 0
            for i, s_ in enumerate([4, 0, 1, 2, 3]):
                n = 4 if s_ < 4 else 2
                op = "v_mfma_f32_16x16x32_bf16" if s_ < 4 else "v_mfma_f32_16x16x16_bf16"
                for b in range(nb):
                    a_ = vr(acc + 36*b + 4*t, 4)
                    A(f"{op} {a_}, {vr(base+4*s_, n)}, {ar(Bag+18*b+4*s_, n)}, {'0' if i == 0 else a_}")
                if i == 0 and t + 2 < 9:
                    rr = reads(t+2)
                    for x in rr[:6]: A(x)
                    pend = rr[6:]
                elif i == 1 and t + 2 < 9:
                    A("s_waitcnt lgkmcnt(12)")
                    for x in pend: A(x)
                m = (len(extra) * (i + 1)) // 5
                for x in extra[k:m]: A(x)
                k = m
    A(f"s_cmp_lg_u32 s{WV}, 3")
    A(f"s_cbranch_scc1 L_convG")
    UB = [FREE1 + 4608, FREE2 + 4608]
    gemm_ag(upread(0), 0, 2, cACC, lambda t: (gelu(cACC, t-1) + gelu(cACC+36, t-1)) if t >= 1 else [])
    for x in gelu(cACC, 8) + gelu(cACC+36, 8): A(x)
    for b in range(2):
        for t in range(9):
            r = cACC + 36*b + 4*t
            pk = cFB + 18*b + 2*t
            A(f"v_cvt_pk_bf16_f32 v{pk}, v{r}, v{r+1}")
            A(f"v_cvt_pk_bf16_f32 v{pk+1}, v{r+2}, v{r+3}")
            if t % 2 == 1: A(f"ds_write_b128 v{TT}, {vr(pk-2,4)} offset:{UB[b] + (t//2)*1024 - FREE1}")
            if t == 8: A(f"ds_write_b64 v{TT+1}, {vr(pk,2)} offset:{UB[b] + 4096 - FREE1}")
    A("s_waitcnt lgkmcnt(0)")
    A("s_barrier")
    A("s_branch L_recv")
    A("L_convG:")
    gemm_ag(upread(1), 0, 1, cACC, lambda t: gelu(cACC, t-2) if t >= 2 else [])
    for x in gelu(cACC, 7) + gelu(cACC, 8): A(x)
    pool = list(range(12, 68, 4)) + list(range(104, 144, 4)) + list(range(164, 176, 4))
    DWr = lambda t, i: pool[t*3 + i]
    A(f"v_lshlrev_b32 v{cT+10}, 4, v{vg}")
    A(f"v_add_u32 v{cT+10}, {DW_L}, v{cT+10}")
    s_, q_, m_, r_ = cT, cT+1, cT+2, cT+3
    rd = [f"ds_read_b128 {vr(DWr(t,i),4)}, v{cT+10} offset:{i*576 + t*64}" for t in range(9) for i in range(3)]
    for x in rd[:15]: A(x)
    A(f"v_mov_b32 v{s_}, v{cACC}")
    A(f"v_mul_f32 v{q_}, v{cACC}, v{cACC}")
    for i in range(1, 36):
        A(f"v_add_f32 v{s_}, v{s_}, v{cACC+i}")
        A(f"v_fmac_f32 v{q_}, v{cACC+i}, v{cACC+i}")
    A("s_waitcnt lgkmcnt(0)")
    for x in rd[15:]: A(x)
    reduce4(A, [s_, q_], cT+4)
    stats(A, s_, q_, m_, r_)
    for i in range(36):
        A(f"v_fma_f32 v{cACC+i}, v{cACC+i}, v{r_}, v{m_}")
    A("s_waitcnt lgkmcnt(0)")
    for t in range(9):
        c = DWr(t, 1)
        for j in range(4): A(f"v_mul_f32 v{c+j}, v{c+j}, v{cACC+4*t+j}")
        for j in range(4): A(f"v_fmac_f32_dpp v{c+j}, v{cACC+4*t+j}, v{DWr(t,0)+j} row_shr:1 row_mask:0xf bank_mask:0xf bound_ctrl:0")
        for j in range(4): A(f"v_fmac_f32_dpp v{c+j}, v{cACC+4*t+j}, v{DWr(t,2)+j} row_shl:1 row_mask:0xf bank_mask:0xf bound_ctrl:0")
    A(f"""
    s_mul_i32 s61, s{WV}, 14
    s_sub_u32 s61, s61, 1
    v_add_u32 v{cT}, s61, v{vq}
    v_add_u32 v{cT+1}, -1, v{vq}
    v_cmp_gt_u32 vcc, 14, v{cT+1}
    v_cmp_gt_u32 s[62:63], 32, v{cT}
    s_and_b64 vcc, vcc, s[62:63]
    v_bfe_u32 v{cT+1}, v{cT}, 4, 1
    v_and_b32 v{cT}, 15, v{cT}
    v_lshl_add_u32 v{cT}, v{vg}, 4, v{cT}
    v_mul_u32_u24 v{cT+2}, 9216, v{cT+1}
    v_mul_u32_u24 v{cT+3}, 4608, v{cT+1}
    v_lshl_add_u32 v{cT+4}, v{cT}, 4, v{cT+2}
    v_lshl_add_u32 v{cT+5}, v{cT}, 3, v{cT+2}
    v_add_u32 v{cT+4}, {UB[0]}, v{cT+4}
    v_add_u32 v{cT+5}, {UB[0] + 4096}, v{cT+5}
    v_lshl_add_u32 v{cT+6}, v{cT}, 4, v{cT+3}
    v_lshl_add_u32 v{cT+7}, v{cT}, 3, v{cT+3}
    v_add_u32 v{cT+6}, {CM + 9216}, v{cT+6}
    v_add_u32 v{cT+7}, {CM + 9216 + 4096}, v{cT+7}
    v_add_u32 v{cT+8}, {DUMMY}, v{vL16}
    v_cndmask_b32 v{cT+6}, v{cT+8}, v{cT+6}, vcc
    v_cndmask_b32 v{cT+7}, v{cT+8}, v{cT+7}, vcc
    s_barrier
    """)
    UR = cACC
    for ks in range(4): A(f"ds_read_b128 {vr(UR+4*ks,4)}, v{cT+4} offset:{ks*1024}")
    A(f"ds_read_b64 {vr(UR+16,2)}, v{cT+5}")
    ZP = cACC + 18
    for t in range(9):
        if t % 2 == 0: A("s_waitcnt lgkmcnt(4)")
        c = DWr(t, 1)
        for j in range(2):
            A(f"v_lshlrev_b32 v{cT+8}, 16, v{UR+2*t+j}")
            A(f"v_and_b32 v{cT+9}, 0xffff0000, v{UR+2*t+j}")
            A(f"v_mul_f32 v{c+2*j}, v{c+2*j}, v{cT+8}")
            A(f"v_mul_f32 v{c+2*j+1}, v{c+2*j+1}, v{cT+9}")
        A(f"v_cvt_pk_bf16_f32 v{ZP+2*t}, v{c}, v{c+1}")
        A(f"v_cvt_pk_bf16_f32 v{ZP+2*t+1}, v{c+2}, v{c+3}")
        if t % 2 == 1: A(f"ds_write_b128 v{cT+6}, {vr(ZP+2*t-2,4)} offset:{(t//2)*1024}")
        if t == 8: A(f"ds_write_b64 v{cT+7}, {vr(ZP+16,2)}")
    A("L_recv:")
    stamp(A, stamps, 7)
    IB = SB
    A(f"""
    s_lshl_b32 s60, s{WV}, 11
    s_add_u32 s60, s60, s76
    s_lshl_b32 s61, s73, 9
    s_add_u32 s61, s61, s76
    s_add_u32 s61, s61, 8192
    s_cmp_lt_u32 s{WV}, 2
    s_cselect_b32 s61, 0x7fff0000, s61
    s_mov_b32 s79, 0
    L_pollx:
    buffer_load_dwordx4 {vr(IB,4)}, v{vL16}, s[52:55], s60 offen sc1
    buffer_load_dwordx4 {vr(IB+4,4)}, v{vL16}, s[52:55], s60 offen offset:1024 sc1
    buffer_load_dwordx2 {vr(IB+8,2)}, v{vL8}, s[52:55], s61 offen sc1
    s_add_u32 s79, s79, 1
    s_waitcnt vmcnt(0)
    v_max3_u32 v204, v{IB}, v{IB+1}, v{IB+2}
    v_max3_u32 v205, v{IB+3}, v{IB+4}, v{IB+5}
    v_max3_u32 v204, v204, v{IB+6}, v{IB+7}
    v_max3_u32 v205, v205, v{IB+8}, v{IB+9}
    v_max_u32 v204, v204, v205
    v_cmp_eq_u32 vcc, -1, v204
    s_cmp_ge_u32 s79, 0x40000
    s_cbranch_scc1 L_gotx
    s_cbranch_vccnz L_pollx
    L_gotx:
    """)
    for i in range(5):
        o = vr(RK + 4*i, 4)
        A(f"v_mfma_f32_16x16x16_bf16 {o}, {vr(ID,2)}, {vr(IB+2*i,2)}, {o}")
    A(f"""
    s_lshl_b32 s60, s{WV}, 10
    s_add_u32 s60, s60, {CM}
    v_add_u32 v204, s60, v{vL16}
    s_mul_i32 s60, s73, 4608
    s_add_u32 s60, s60, {CM + 4096}
    s_cmp_lt_u32 s{WV}, 2
    s_cselect_b32 s60, {DUMMY + 1024}, s60
    v_add_u32 v205, s60, v{vL8}
    v_add_u32 v206, {CM}, v{vL16}
    v_add_u32 v207, {CM + 4096}, v{vL8}
    """)
    PK = 164
    for i in range(10):
        A(f"v_cvt_pk_bf16_f32 v{PK+i}, v{RK+2*i}, v{RK+2*i+1}")
        if i == 3: A(f"ds_write_b128 v204, {vr(PK,4)}")
        if i == 7: A(f"ds_write_b128 v204, {vr(PK+4,4)} offset:4608")
    A(f"ds_write_b64 v205, {vr(PK+8,2)}")
    A("s_waitcnt lgkmcnt(0)")
    A("s_barrier")
    FBR = 0
    AZ = 80; AT = 100
    order = []
    for m_ in (2, 3): order.append((m_, 4))
    for ks in range(4):
        for m_ in (2, 3): order.append((m_, ks))
    for m_ in (0, 1): order.append((m_, 4))
    for ks in range(4):
        for m_ in (0, 1): order.append((m_, ks))
    def rdf(m_, ks):
        if ks == 4: return f"ds_read_b64 {vr(FBR+20*m_+16,2)}, v207 offset:{m_*4608}"
        return f"ds_read_b128 {vr(FBR+20*m_+4*ks,4)}, v206 offset:{m_*4608 + ks*1024}"
    for x in order[:14]: A(rdf(*x))
    jobs = [(0, 0), (1, 0), (0, 1), (1, 1), (2, 0), (2, 1)]
    def fg(acc, mat, s_):
        n = 4 if s_ < 4 else 2
        op = "v_mfma_f32_16x16x32_bf16" if s_ < 4 else "v_mfma_f32_16x16x16_bf16"
        for jn, (i, sg) in enumerate(jobs):
            a_ = vr(acc + 4*jn, 4)
            A(f"{op} {a_}, {ar(WA+(mat*3+i)*18+4*s_, n)}, {vr(FBR+20*(2*mat+sg)+4*s_, n)}, {'0' if s_ == 4 else a_}")
    AZ = 80; AT = 104
    A("s_waitcnt lgkmcnt(12)")
    fg(AZ, 1, 4)
    A("s_waitcnt lgkmcnt(8)")
    for x in order[14:]: A(rdf(*x))
    fg(AZ, 1, 0); fg(AZ, 1, 1)
    A("s_waitcnt lgkmcnt(8)")
    L = 128
    for sg in range(2): A(f"v_and_b32 v{L+sg}, 0xffff0000, v{FBR+20*sg+17}")
    fg(AT, 0, 4)
    for sg in range(2): A(f"v_mov_b32 v{L+2+sg}, v{L+sg}")
    fg(AZ, 1, 2)
    for sg in range(2): A(f"v_permlane32_swap_b32 v{L+2+sg}, v{L+sg}")
    fg(AZ, 1, 3)
    for sg in range(2): A(f"v_mov_b32 v{L+2+sg}, v{L+sg}")
    A("s_waitcnt lgkmcnt(0)")
    fg(AT, 0, 0)
    for sg in range(2): A(f"v_permlane16_swap_b32 v{L+2+sg}, v{L+sg}")
    fg(AT, 0, 1)
    for sg in range(2): A(f"v_rcp_f32 v{L+sg}, v{L+sg}")
    fg(AT, 0, 2)
    fg(AT, 0, 3)
    srd_off(A, 40, POUT, sBOFF, 1152000)
    U = 132
    for jn, (i, sg) in enumerate(jobs[:4]):
        xb = XR + 4*sg + 2*i
        for j in range(2):
            A(f"v_lshlrev_b32 v{U}, 16, v{xb+j}")
            A(f"v_and_b32 v{U+1}, 0xffff0000, v{xb+j}")
            A(f"v_add_f32 v{AZ+4*jn+2*j}, v{AZ+4*jn+2*j}, v{U}")
            A(f"v_add_f32 v{AZ+4*jn+2*j+1}, v{AZ+4*jn+2*j+1}, v{U+1}")
    A(f"s_cmp_eq_u32 s73, 1")
    A(f"s_cselect_b64 vcc, -1, 0")
    A(f"s_mov_b32 s62, 4608")
    A(f"s_cmp_ge_u32 s{WV}, 2")
    A(f"s_cselect_b32 s63, 0x7fff0000, 0")
    for jn, (i, sg) in enumerate(jobs):
        for j in range(4):
            A(f"v_fma_f32 v{AZ+4*jn+j}, v{AT+4*jn+j}, v{L+sg}, v{AZ+4*jn+j}")
        if i < 2:
            dst = PK + 4*sg + 2*i
            A(f"v_cvt_pk_bf16_f32 v{dst}, v{AZ+4*jn}, v{AZ+4*jn+1}")
            A(f"v_cvt_pk_bf16_f32 v{dst+1}, v{AZ+4*jn+2}, v{AZ+4*jn+3}")
            if i == 1:
                A(f"buffer_store_dwordx4 {vr(PK+4*sg,4)}, v{vxo}, s[40:43], {'0' if sg == 0 else 's62'} offen")
    for j in range(4): A(f"v_cndmask_b32 v{AZ+16+j}, v{AZ+16+j}, v{AZ+20+j}, vcc")
    for j in range(2):
        A(f"v_lshlrev_b32 v{U}, 16, v{XR+8+j}")
        A(f"v_and_b32 v{U+1}, 0xffff0000, v{XR+8+j}")
        A(f"v_add_f32 v{AZ+16+2*j}, v{AZ+16+2*j}, v{U}")
        A(f"v_add_f32 v{AZ+17+2*j}, v{AZ+17+2*j}, v{U+1}")
    A(f"v_cvt_pk_bf16_f32 v{PK+8}, v{AZ+16}, v{AZ+17}")
    A(f"v_cvt_pk_bf16_f32 v{PK+9}, v{AZ+18}, v{AZ+19}")
    A(f"buffer_store_dwordx2 {vr(PK+8,2)}, v{vx8}, s[40:43], s63 offen")
    if spin is not None:
        r = 98 if spin < 0 else 80 + 2*spin
        A("s_waitcnt vmcnt(0)")
        A("s_memrealtime s[96:97]")
        A("s_waitcnt lgkmcnt(0)")
        if spinwg is not None:
            A(f"s_cmp_lg_u32 s2, {spinwg}")
            A("s_cbranch_scc1 L_end")
        A(f"""
        s_add_u32 s{r}, s{r}, 6000
        L_spin:
        s_memrealtime s[60:61]
        s_waitcnt lgkmcnt(0)
        s_sub_u32 s62, s60, s{r}
        s_cmp_lt_i32 s62, 0
        s_cbranch_scc1 L_spin
        """)
    elif stamps:
        A(f"""
        s_waitcnt vmcnt(0)
        s_memrealtime s[96:97]
        s_lshl_b32 s4, s2, 2
        s_add_u32 s4, s4, s{WV}
        s_mul_i32 s5, s4, 80
        s_add_u32 s5, s5, {STAMP}
        s_waitcnt lgkmcnt(0)
        v_mov_b32 v4, s5
        """)
        for i in range(9):
            A(f"v_mov_b32 v0, s{80+2*i}")
            A(f"v_mov_b32 v1, s{81+2*i}")
            A(f"global_store_dwordx2 v4, v[0:1], s[{PWS}:{PWS+1}] offset:{8*i}")
    A("s_endpgm")

    A("L_roleW:")
    A(f"""
    s_lshl_b32 s4, s{sHALF}, 2
    s_add_u32 s4, s4, s{WV}                   ; d tile
    s_mul_i32 s8, s{sB}, 41472
    s_cmp_eq_u32 s{sB}, 0
    s_cselect_b32 s10, s{PWV}, s{PWDN}
    s_cselect_b32 s11, s{PWV+1}, s{PWDN+1}
    """)
    srd(A, 40, 10, 41472); srd(A, 44, PWAO, 41472); srd_off(A, 48, PWM, 8, 41472); srd(A, 52, PWS, WS_USED); srd(A, 56, PDBG, 256)
    linear_dma(44, 0)
    linear_dma(48, 41984)
    A(f"""
    v_lshlrev_b32 v7, 3, v{vg}
    v_add_u32 v7, {143*288}, v7
    """)
    for x in xloads(40, 7, X): A(x)
    vp, vn = T+8, T+9
    A(f"""
    v_add_u32 v{vn}, 41984, v{vtr}
    v_and_b32 v{T}, 3, v{lane}
    v_lshl_add_u32 v{vp}, v{T}, 3, v{vn}
    s_waitcnt vmcnt(0)
    s_barrier
    L_wtile:
    s_lshl_b32 s5, s4, 4
    v_add_u32 v6, s5, v{vq}
    v_mul_u32_u24 v6, 288, v6
    v_lshl_add_u32 v6, v{vg}, 3, v6
    """)
    for x in xloads(40, 6, B2): A(x)
    A(f"""
    s_waitcnt vmcnt(0)
    s_cmp_lg_u32 s{sB}, 0
    s_cbranch_scc1 L_w2
    """)
    for i in range(18):
        A(f"v_lshlrev_b32 v{T}, 16, v{B2+i}")
        A(f"v_and_b32 v{T+1}, 0xffff0000, v{B2+i}")
        A(f"v_lshlrev_b32 v{T+2}, 16, v{X+i}")
        A(f"v_and_b32 v{T+3}, 0xffff0000, v{X+i}")
        A(f"v_sub_f32 v{T}, v{T}, v{T+2}")
        A(f"v_sub_f32 v{T+1}, v{T+1}, v{T+3}")
        A(f"v_cvt_pk_bf16_f32 v{XA+i}, v{T}, v{T+1}")
    gemm(A, trread(vtr), XA, ACC, FB)
    for t in range(9):
        A(f"v_cvt_pk_bf16_f32 v{B2+2*t}, v{ACC+4*t}, v{ACC+4*t+1}")
        A(f"v_cvt_pk_bf16_f32 v{B2+2*t+1}, v{ACC+4*t+2}, v{ACC+4*t+3}")
    A("L_w2:")
    def wmread(t, p, reg):
        if t < 8:
            return f"ds_read_b64_tr_b16 v[{reg}:{reg+1}], v{vp} offset:{p*4608 + (t//2)*64 + (t%2)*8}"
        return f"ds_read_b64_tr_b16 v[{reg}:{reg+1}], v{vn} offset:{p*4608 + 256}"
    gemm(A, wmread, B2, ACC2, FB, swap=True)
    A(f"""
    s_lshr_b32 s5, s4, 1
    s_lshl_b32 s5, s5, 10
    s_and_b32 s60, s4, 1
    s_lshl_b32 s60, s60, 3
    s_add_u32 s5, s5, s60
    s_add_u32 s5, s5, s8
    s_add_u32 s5, s5, {WF}
    s_cmp_eq_u32 s4, 8
    s_cselect_b32 s60, 3, 4
    v_lshlrev_b32 v{T}, s60, v{lane}
    """)
    for t in range(9):
        A(f"v_cvt_pk_bf16_f32 v{XA+2*t}, v{ACC2+4*t}, v{ACC2+4*t+1}")
        A(f"v_cvt_pk_bf16_f32 v{XA+2*t+1}, v{ACC2+4*t+2}, v{ACC2+4*t+3}")
        A(f"s_add_u32 s60, s5, {t*4608}")
        A(f"buffer_store_dwordx2 v[{XA+2*t}:{XA+2*t+1}], v{T}, s[52:55], s60 offen sc1")
    A(f"""
    s_add_u32 s4, s4, 8
    s_cmp_lt_u32 s4, 9
    s_cbranch_scc1 L_wtile
    s_waitcnt vmcnt(0)
    s_barrier
    s_cmp_lg_u32 s{WV}, 0
    s_cbranch_scc1 L_end
    v_mov_b32 v{T}, 1
    v_mov_b32 v{T+1}, 8
    s_mov_b64 exec, 1
    buffer_atomic_add v{T}, v{T+1}, s[56:59], 0 offen sc1
    L_end:
    s_endpgm
    """)
    return A
```

```python
import sys
sys.path.insert(0, "gen")
from asmlib import *
import hazard, k3
HDR = open("standalone__conformer_family_branchformer__speech.s.ref").read().split("; Override launch")[0]
KN = "standalone__conformer_family_branchformer__speech_kernel"
def finish(A, tag):
    lines, probs = hazard.fix(A.lines, auto=True, timed=False)
    n = sum(1 for a in lines if a.strip().startswith("s_nop")) - sum(1 for a in A.lines if a.strip().startswith("s_nop"))
    print(f"{tag}: {len(lines)} lines, {n} nops inserted", file=sys.stderr)
    return "\n".join(lines) + "\n"
def build(path, **kw):
    txt = HDR + f"; @launch grid=({k3.NWG},1,1) block=(256,1,1) lds={k3.LDS}\n" + HEADER
    txt += kernel_begin(KN) + finish(k3.gen(KN, **kw), "k3")
    txt += '.section .rodata,"a"\n.p2align 6\n' + kernel_desc(KN, 512, 102, 256)
    open(path, "w").write(txt)
if __name__ == "__main__":
    build("f1.s")
    build("f1dbg.s", stamps=True)
    for k in range(-1, 9):
        build(f"sp{k+1}.s", spin=k)
    build(f"spw0.s", spin=-1, spinwg=0)
    build(f"spw200.s", spin=-1, spinwg=200)
```
